```python
import torch

def _softmax(x, axis=-1):
    return torch.softmax(x, dim=axis)
def _gelu(x):
    return torch.nn.functional.gelu(x, approximate="tanh")
def _silu(x):
    return torch.nn.functional.silu(x)
def _sigmoid(x):
    return torch.sigmoid(x)
def _layernorm(x, axis=-1, eps=1e-5):
    m = x.mean(dim=axis, keepdim=True)
    v = x.var(dim=axis, keepdim=True, unbiased=False)
    return (x - m) / torch.sqrt(v + eps)
def _scatter_add(tgt, idx, src, axis=0):
    return tgt.clone().index_add_(axis, idx, src)
def _segment_sum(src, seg, n):
    out = torch.zeros((n,) + src.shape[1:], dtype=src.dtype)
    return out.index_add_(0, seg, src)
def _pad(x, pw):
    flat = tuple(v for pair in reversed(pw) for v in pair)
    return torch.nn.functional.pad(x, flat)

kernel_name = 'recurrent_scan__spectral_gfnet__glu_gated_geglu__prompt'

def setup_inputs():

    _w = (lambda a: (lambda t: t.to(torch.bfloat16) if t.is_floating_point() else t)(torch.as_tensor(a)))
    def _A_setup():
        B, S, D = 1, 2048, 1024
        Df = D // 2 + 1
        return {
            "x": _w((lambda *s: torch.randn(*s, dtype=torch.bfloat16) * 0.2)(B, S, D)),
            "w_r": _w((lambda *s: torch.randn(*s, dtype=torch.bfloat16) * 1.6)(S, Df) * 0.02),
            "w_i": _w((lambda *s: torch.randn(*s, dtype=torch.bfloat16) * 1.6)(S, Df) * 0.02),
        }
    _A_in = _A_setup()

    def _B_setup():
        B, S, Dm, Df = 1, 2048, 1024, 3584
        return {
            "x": _w((lambda *s: torch.randn(*s, dtype=torch.bfloat16) * 0.2)(B, S, Dm)),
            "w_gate": _w((lambda *s: torch.randn(*s, dtype=torch.bfloat16) * 0.8)(Dm, Df) * (Dm ** -0.5)),
            "w_up": _w((lambda *s: torch.randn(*s, dtype=torch.bfloat16) * 0.8)(Dm, Df) * (Dm ** -0.5)),
            "w_down": _w((lambda *s: torch.randn(*s, dtype=torch.bfloat16) * 0.8)(Df, Dm) * (Df ** -0.5)),
        }
    _B_in = _B_setup()

    return {
        "A_x": _A_in["x"],
        "A_w_r": _A_in["w_r"],
        "A_w_i": _A_in["w_i"],
        "B_x": _B_in["x"],
        "B_w_gate": _B_in["w_gate"],
        "B_w_up": _B_in["w_up"],
        "B_w_down": _B_in["w_down"],
    }

def reference(A_x, A_w_r, A_w_i, B_x, B_w_gate, B_w_up, B_w_down):
    def _A_ref(x, w_r, w_i):
        B, S, D = x.shape
        X = (lambda x, axes=(-2,-1): torch.fft.rfft2(x.float(), dim=axes))(x, axes=(-2, -1))
        W = w_r + 1j * w_i
        X = X * W
        y = (lambda x, s, axes=(-2,-1): torch.fft.irfft2(x, s=s, dim=axes).to(torch.bfloat16))(X, (S, D), axes=(-2, -1))
        return y

    def _B_ref(x, w_gate, w_up, w_down):
        g = torch.einsum("bsd,df->bsf", x, w_gate)
        u = torch.einsum("bsd,df->bsf", x, w_up)
        h = _gelu(g) * u
        return torch.einsum("bsf,fd->bsd", h, w_down)

    x = A_x
    xn = _layernorm(x, axis=-1)
    s = _A_ref(xn, A_w_r, A_w_i)
    g = _silu(_B_ref(xn, B_w_gate, B_w_up, B_w_down))
    return x + s * g
```

```python
import struct

def f32hex(x):
    return "0x%08x" % struct.unpack("<I", struct.pack("<f", x))[0]

class K:
    def __init__(self, name):
        self.name = name
        self.lines = []
        self.vmq = []
        self.lgq = []
        self.nlabel = 0
    def e(self, s):
        self.lines.append("    " + s)
    def c(self, s):
        self.lines.append("    ; " + s)
    def label(self, l):
        self.lines.append(l + ":")
    def newlabel(self, base="L"):
        self.nlabel += 1
        return f"{self.name}_{base}{self.nlabel}"
    def nop(self, n):
        while n > 0:
            k = min(n, 16)
            self.e(f"s_nop {k-1}")
            n -= k
    def vm(self, s, tag):
        self.e(s); self.vmq.append(tag)
    def lg(self, s, tag):
        self.e(s); self.lgq.append(tag)
    def _need(self, q, tags):
        if not isinstance(tags, (list, tuple, set)) or (isinstance(tags, tuple) and tags and not isinstance(tags[0], (tuple, list))):
            tags = [tags]
        idx = -1
        for i, t in enumerate(q):
            if t in tags:
                idx = i
        if idx < 0:
            return None
        n = len(q) - 1 - idx
        del q[:idx + 1]
        return n
    def need(self, vm=None, lg=None):
        parts = []
        if vm is not None:
            n = self._need(self.vmq, vm)
            if n is not None:
                parts.append(f"vmcnt({min(n,63)})")
        if lg is not None:
            n = self._need(self.lgq, lg)
            if n is not None:
                parts.append(f"lgkmcnt({min(n,15)})")
        if parts:
            self.e("s_waitcnt " + " ".join(parts))
    def drain(self, vm=True, lg=True):
        parts = []
        if vm: parts.append("vmcnt(0)"); self.vmq = []
        if lg: parts.append("lgkmcnt(0)"); self.lgq = []
        self.e("s_waitcnt " + " ".join(parts))
    def text(self):
        return "\n".join(self.lines) + "\n"

def vr(a, n=1):
    return f"v{a}" if n == 1 else f"v[{a}:{a+n-1}]"
def sr(a, n=1):
    return f"s{a}" if n == 1 else f"s[{a}:{a+n-1}]"

def kernel_header(name):
    return (f".globl {name}\n.p2align 8\n.type {name},@function\n{name}:\n")

def kernel_desc(name, nvgpr, nsgpr, accum_offset=None):
    if accum_offset is None:
        accum_offset = (nvgpr + 3) // 4 * 4
    return (f".amdhsa_kernel {name}\n  .amdhsa_next_free_vgpr {nvgpr}\n  .amdhsa_next_free_sgpr {nsgpr}\n"
            f"  .amdhsa_accum_offset {accum_offset}\n  .amdhsa_group_segment_fixed_size 0\n  .amdhsa_kernarg_size 80\n"
            f"  .amdhsa_user_sgpr_count 2\n  .amdhsa_user_sgpr_kernarg_segment_ptr 1\n  .amdhsa_system_sgpr_workgroup_id_x 1\n"
            f".end_amdhsa_kernel\n")
```

```python
import math
from asmlib import f32hex

class Pool:
    def __init__(self, lo, hi):
        assert lo % 2 == 0
        self.free = list(range(lo, hi - 1, 2))
    def alloc2(self):
        r = self.free.pop(0)
        return [r, r + 1]
    def release2(self, c):
        assert c[1] == c[0] + 1 and c[0] % 2 == 0
        self.free.append(c[0])

def bfly(k, pool, a, b):
    n = pool.alloc2()
    k.e(f"v_add_f32 v{n[0]}, v{a[0]}, v{b[0]}")
    k.e(f"v_add_f32 v{n[1]}, v{a[1]}, v{b[1]}")
    k.e(f"v_sub_f32 v{b[0]}, v{a[0]}, v{b[0]}")
    k.e(f"v_sub_f32 v{b[1]}, v{a[1]}, v{b[1]}")
    pool.release2(a)
    return n, b

def bfly_tw(k, pool, a, b, num, den, sign):
    num = num % den
    if num == 0:
        return bfly(k, pool, a, b)
    n = pool.alloc2()
    k.e(f"v_add_f32 v{n[0]}, v{a[0]}, v{b[0]}")
    k.e(f"v_add_f32 v{n[1]}, v{a[1]}, v{b[1]}")
    ang = sign * 2 * math.pi * num / den
    if 4 * num == den:
        t = pool.alloc2()
        if sign < 0:
            k.e(f"v_sub_f32 v{t[0]}, v{a[1]}, v{b[1]}")
            k.e(f"v_sub_f32 v{t[1]}, v{b[0]}, v{a[0]}")
        else:
            k.e(f"v_sub_f32 v{t[0]}, v{b[1]}, v{a[1]}")
            k.e(f"v_sub_f32 v{t[1]}, v{a[0]}, v{b[0]}")
        pool.release2(a); pool.release2(b)
        return n, t
    k.e(f"v_sub_f32 v{b[0]}, v{a[0]}, v{b[0]}")
    k.e(f"v_sub_f32 v{b[1]}, v{a[1]}, v{b[1]}")
    pool.release2(a)
    c = math.cos(ang); s = math.sin(ang)
    t = pool.alloc2()
    if (8 * num) % den == 0:
        r = abs(c)
        sc = 1 if c > 0 else -1; ss = 1 if s > 0 else -1
        def comb(dst, p, q, sp, sq):
            if sp > 0 and sq > 0: k.e(f"v_add_f32 v{dst}, v{p}, v{q}")
            elif sp > 0 and sq < 0: k.e(f"v_sub_f32 v{dst}, v{p}, v{q}")
            elif sp < 0 and sq > 0: k.e(f"v_sub_f32 v{dst}, v{q}, v{p}")
            else:
                k.e(f"v_add_f32 v{dst}, v{p}, v{q}")
                return -1
            return 1
        f0 = comb(t[0], b[0], b[1], sc, -ss)
        f1 = comb(t[1], b[0], b[1], ss, sc)
        k.e(f"v_mul_f32 v{t[0]}, {f32hex(f0*r)}, v{t[0]}")
        k.e(f"v_mul_f32 v{t[1]}, {f32hex(f1*r)}, v{t[1]}")
        pool.release2(b)
        return n, t
    k.e(f"v_mul_f32 v{t[0]}, {f32hex(c)}, v{b[0]}")
    k.e(f"v_mul_f32 v{t[1]}, {f32hex(s)}, v{b[0]}")
    k.e(f"v_fmac_f32 v{t[0]}, {f32hex(-s)}, v{b[1]}")
    k.e(f"v_fmac_f32 v{t[1]}, {f32hex(c)}, v{b[1]}")
    pool.release2(b)
    return n, t

def dft(k, pool, x, sign):
    N = len(x)
    if N == 1:
        return x
    h = N // 2
    ev = []; od = []
    for n in range(h):
        a, b = bfly_tw(k, pool, x[n], x[n + h], n, N, sign)
        ev.append(a); od.append(b)
    ye = dft(k, pool, ev, sign)
    yo = dft(k, pool, od, sign)
    y = [None] * N
    for i in range(h):
        y[2*i] = ye[i]; y[2*i+1] = yo[i]
    return y

def cmul_reg(k, pool, x, tw, conj=False):
    t, u = pool.alloc2()
    k.e(f"v_mul_f32 v{t}, v{x[1]}, v{tw[1]}")
    k.e(f"v_mul_f32 v{u}, v{x[1]}, v{tw[0]}")
    if not conj:
        k.e(f"v_fma_f32 v{t}, v{x[0]}, v{tw[0]}, -v{t}")
        k.e(f"v_fma_f32 v{u}, v{x[0]}, v{tw[1]}, v{u}")
    else:
        k.e(f"v_fma_f32 v{t}, v{x[0]}, v{tw[0]}, v{t}")
        k.e(f"v_fma_f32 v{u}, -v{x[0]}, v{tw[1]}, v{u}")
    pool.release2(x)
    return [t, u]

def twiddle_table_text(label="twtab"):
    import struct
    lines = [".p2align 8", f".type {label},@object", f".size {label}, 16384", f"{label}:"]
    for j in range(2048):
        a = -2 * math.pi * j / 2048
        c = struct.unpack("<I", struct.pack("<f", math.cos(a)))[0]
        s = struct.unpack("<I", struct.pack("<f", math.sin(a)))[0]
        lines.append(f".long 0x{c:08x}, 0x{s:08x}")
    return "\n".join(lines) + "\n"

if __name__ == "__main__":
    import re, numpy as np, struct
    class KK:
        def __init__(s): s.lines = []
        def e(s, t): s.lines.append(t)
    def run(lines, regs):
        def val(tok):
            neg = tok.startswith("-")
            if neg: tok = tok[1:]
            if tok.startswith("v"): v = regs[int(tok[1:])]
            elif tok.startswith("0x"): v = np.float32(struct.unpack("<f", struct.pack("<I", int(tok, 16)))[0])
            else: v = np.float32(float(tok))
            return -v if neg else v
        for l in lines:
            op, rest = l.split(None, 1)
            ops = [o.strip() for o in rest.split(",")]
            d = int(ops[0][1:])
            if op == "v_add_f32": regs[d] = val(ops[1]) + val(ops[2])
            elif op == "v_sub_f32": regs[d] = val(ops[1]) - val(ops[2])
            elif op == "v_mul_f32": regs[d] = val(ops[1]) * val(ops[2])
            elif op == "v_fmac_f32": regs[d] = regs[d] + val(ops[1]) * val(ops[2])
            elif op == "v_fma_f32": regs[d] = val(ops[1]) * val(ops[2]) + val(ops[3])
            else: raise Exception(op)
    for N in (2, 4, 8, 16):
        for sign in (-1, 1):
            kk = KK(); pool = Pool(2*N, 2*N + 40)
            x = [[2*i, 2*i+1] for i in range(N)]
            regs = {}
            rng = np.random.default_rng(N)
            xv = rng.standard_normal(N) + 1j * rng.standard_normal(N)
            for i in range(N):
                regs[2*i] = np.float32(xv[i].real); regs[2*i+1] = np.float32(xv[i].imag)
            y = dft(kk, pool, x, sign)
            run(kk.lines, regs)
            got = np.array([regs[a] + 1j * regs[b] for a, b in y])
            exp = np.fft.fft(xv) if sign < 0 else np.fft.ifft(xv) * N
            print(N, sign, "instrs", len(kk.lines), "err", np.abs(got - exp).max())
```

```python
from asmlib import *
from layout import *

NAME = "gemm1_kernel"
STAGE_BYTES = 28800
UP_OFF = 14464
NB = 4
LDS_BYTES = STAGE_BYTES * NB

def gen(no_gl=False, no_mfma=False, no_tr=False, no_epi=False, no_bar=False):
    k = K("g1")
    e = k.e
    ACC = 128
    ASET = [64, 92]
    BSET = [32, 48]
    vL, vLc, vLn = 7, 8, 9
    e("s_cmp_ge_u32 s2, 256")
    e("s_cbranch_scc1 g1_end")
    e("s_load_dwordx2 s[4:5], s[0:1], 32")
    e("s_load_dwordx2 s[6:7], s[0:1], 40")
    e("s_load_dwordx2 s[8:9], s[0:1], 72")
    e("s_and_b32 s23, s2, 7")
    e("s_lshr_b32 s31, s2, 3")
    e("s_and_b32 s20, s23, 3")
    e("s_lshl_b32 s20, s20, 3")
    e("s_and_b32 s32, s31, 7")
    e("s_add_u32 s20, s20, s32")
    e("s_lshr_b32 s21, s23, 2")
    e("s_lshl_b32 s21, s21, 2")
    e("s_lshr_b32 s32, s31, 3")
    e("s_add_u32 s21, s21, s32")
    e("v_lshrrev_b32 v10, 6, v0")
    e("v_and_b32 v1, 63, v0")
    e("s_nop 0")
    e("v_readfirstlane_b32 s22, v10")
    e("s_waitcnt lgkmcnt(0)")
    e("s_cmp_lt_u32 s22, 4")
    e("s_cselect_b32 s12, s4, s6")
    e("s_cselect_b32 s13, s5, s7")
    e("s_mov_b32 s14, %d" % (1024 * 7168))
    e("s_mov_b32 s15, 0x00020000")
    e("s_mov_b32 s16, s8")
    e("s_mov_b32 s17, s9")
    e("s_mov_b32 s18, %d" % WS_BYTES)
    e("s_mov_b32 s19, 0x00020000")
    e("s_and_b32 s23, s22, 3")
    e("s_mul_i32 s23, s23, 224")
    e("s_mul_i32 s31, s20, 224")
    for j in range(4):
        e(f"v_add_u32 v10, {64*j}, v1")
        e("v_add_u32 v10, s23, v10")
        e("v_mul_u32_u24 v11, 4682, v10")
        e("v_lshrrev_b32 v11, 16, v11")
        e("v_mul_u32_u24 v12, 14, v11")
        e("v_sub_u32 v12, v10, v12")
        e("v_mul_u32_u24 v11, 7168, v11")
        e("v_lshlrev_b32 v12, 4, v12")
        e(f"v_add3_u32 v{2+j}, v11, v12, s31")
    e("v_lshlrev_b32 v6, 4, v1")
    e("v_lshrrev_b32 v10, 5, v1")
    e("v_lshlrev_b32 v10, 3, v10")
    e("v_bfe_u32 v11, v1, 2, 2")
    e("v_add_u32 v10, v10, v11")
    e("v_mul_u32_u24 v10, 224, v10")
    e("v_bfe_u32 v11, v1, 4, 1")
    e(f"v_mul_u32_u24 v11, {UP_OFF}, v11")
    e("v_and_b32 v12, 3, v1")
    e("v_lshlrev_b32 v12, 3, v12")
    e(f"v_add3_u32 v{vL}, v10, v11, v12")
    e("s_mov_b32 s24, 0")
    e("s_lshl_b32 s25, s21, 3")
    e("s_add_u32 s25, s25, s22")
    e("s_lshl_b32 s25, s25, 16")
    e("s_and_b32 s23, s22, 3")
    e("s_mul_i32 s29, s23, 3584")
    e("s_cmp_lt_u32 s22, 4")
    e(f"s_cselect_b32 s23, 0, {UP_OFF}")
    e("s_add_u32 s29, s29, s23")

    def dma(stage_tag, bufreg):
        for j in range(4):
            e(f"s_add_u32 s23, {bufreg}, s29")
            if j: e(f"s_add_u32 m0, s23, {1024*j}")
            else: e("s_mov_b32 m0, s23")
            if j == 3:
                e("s_mov_b32 exec_hi, 0")
            else:
                e("s_nop 0")
            if no_gl: k.vmq.append(stage_tag)
            else: k.vm(f"buffer_load_dwordx4 v{2+j}, s[12:15], s24 offen lds", stage_tag)
            if j == 3:
                e("s_mov_b32 exec_hi, -1")
        e(f"s_add_u32 s24, s24, {64*7168}")

    def bload(bset, tag):
        for q in range(4):
            if no_gl: k.vmq.append(tag)
            else: k.vm(f"buffer_load_dwordx4 {vr(bset+4*q,4)}, v6, s[16:19], s25 offen offset:{1024*q}", tag)
        e("s_add_u32 s25, s25, 4096")

    def trread(aset, j, q, vaddr, tag):
        for hh in range(2):
            off = (16*q + 4*hh) * 224 + 32*j
            if no_tr: k.lgq.append(tag)
            else: k.lg(f"ds_read_b64_tr_b16 {vr(aset+4*j+2*hh,2)}, v{vaddr} offset:{off}", tag)

    e("s_mov_b32 s26, 0")
    e(f"s_mov_b32 s27, {STAGE_BYTES}")
    e(f"s_mov_b32 s28, {2*STAGE_BYTES}")
    dma(("dma", 0), "s26")
    dma(("dma", 1), "s27")
    bload(BSET[0], ("b", 0))
    dma(("dma", 2), "s28")
    e(f"s_mov_b32 s28, {3*STAGE_BYTES}")
    for i in range(112):
        e(f"v_mov_b32 v{ACC+i}, 0")
    e(f"v_mov_b32 v{vLc}, v{vL}")
    e(f"v_add_u32 v{vLn}, s27, v{vL}")
    k.need(vm=("dma", 0))
    e("s_barrier")
    for j in range(7):
        trread(ASET[0], j, 0, vLc, ("a", 0, j))
    e("s_mov_b32 s30, 8")
    start_vm = list(k.vmq); start_lg = list(k.lgq)

    def iteration(par):
        B = BSET[par]; Bn = BSET[1-par]
        bload(Bn, ("b", 1))
        k.need(vm=("b", 0))
        for q in range(4):
            Acur = ASET[q % 2]; Anext = ASET[(q+1) % 2]
            for j in range(7):
                k.need(lg=("a", q, j))
                if not no_mfma: e(f"v_mfma_f32_32x32x16_bf16 {vr(ACC+16*j,16)}, {vr(Acur+4*j,4)}, {vr(B+4*q,4)}, {vr(ACC+16*j,16)}")
                if q < 3:
                    trread(Anext, j, q+1, vLc, ("a", q+1, j))
                else:
                    trread(Anext, j, 0, vLn, ("a", 4, j))
            if q == 1:
                k.need(vm=("dma", 1))
                if not no_bar: e("s_barrier")
                dma(("dma", 3), "s28")
        e(f"v_mov_b32 v{vLc}, v{vLn}")
        e("s_mov_b32 s26, s27")
        e(f"s_add_u32 s27, s27, {STAGE_BYTES}")
        e(f"s_cmp_ge_u32 s27, {NB*STAGE_BYTES}")
        e(f"s_cselect_b32 s23, {NB*STAGE_BYTES}, 0")
        e("s_sub_u32 s27, s27, s23")
        e(f"s_add_u32 s28, s28, {STAGE_BYTES}")
        e(f"s_cmp_ge_u32 s28, {NB*STAGE_BYTES}")
        e(f"s_cselect_b32 s23, {NB*STAGE_BYTES}, 0")
        e("s_sub_u32 s28, s28, s23")
        e(f"v_add_u32 v{vLn}, s27, v{vL}")
        def sh(t):
            if t[0] in ("dma", "b"): return (t[0], t[1]-1)
            if t[0] == "a": return ("a", t[1]-4, t[2])
        k.vmq = [sh(t) for t in k.vmq]; k.lgq = [sh(t) for t in k.lgq]

    k.label("g1_loop")
    iteration(0)
    iteration(1)
    assert k.vmq == start_vm and k.lgq == start_lg, (k.vmq, start_vm, k.lgq, start_lg)
    e("s_sub_u32 s30, s30, 1")
    e("s_cmp_lg_u32 s30, 0")
    e("s_cbranch_scc1 g1_loop")
    k.drain()
    k.nop(16)
    e("v_and_b32 v10, 31, v1")
    e("v_lshlrev_b32 v10, 4, v10")
    e("v_lshrrev_b32 v11, 5, v1")
    e("v_lshlrev_b32 v11, 3, v11")
    e("v_add_u32 v10, v10, v11")
    e("s_lshl_b32 s23, s21, 3")
    e("s_add_u32 s23, s23, s22")
    e("s_mul_i32 s23, s23, 448")
    e("s_mul_i32 s31, s20, 14")
    e("s_add_u32 s23, s23, s31")
    e("s_lshl_b32 s23, s23, 9")
    e(f"s_add_u32 s24, s23, {H_OFF}")
    e(f"s_mov_b32 s32, {f32hex(-2.302208198)}")
    e(f"s_mov_b32 s33, {f32hex(-0.1029432397)}")
    e("s_mov_b32 s34, 0xffff0000")
    T = 16
    for j in range(0 if no_epi else 7):
        for ch in range(2):
            g0 = ACC + 16*j + 4*ch; u0 = g0 + 8
            for p in range(2):
                e(f"v_cvt_pk_bf16_f32 v{T+p}, v{g0+2*p}, v{g0+2*p+1}")
                e(f"v_cvt_pk_bf16_f32 v{T+2+p}, v{u0+2*p}, v{u0+2*p+1}")
            for p in range(2):
                e(f"v_lshlrev_b32 v{T+4+2*p}, 16, v{T+p}")
                e(f"v_and_b32 v{T+5+2*p}, s34, v{T+p}")
                e(f"v_lshlrev_b32 v{T+8+2*p}, 16, v{T+2+p}")
                e(f"v_and_b32 v{T+9+2*p}, s34, v{T+2+p}")
            for i in range(4):
                e(f"v_mul_f32 v{T+12+i}, v{T+4+i}, v{T+4+i}")
            for i in range(4):
                e(f"v_fma_f32 v{T+12+i}, v{T+12+i}, s33, s32") if False else None
            for i in range(4):
                e(f"v_fma_f32 v{T+12+i}, v{T+12+i}, v240, v241")
            for i in range(4):
                e(f"v_mul_f32 v{T+12+i}, v{T+4+i}, v{T+12+i}")
            for i in range(4):
                e(f"v_exp_f32 v{T+12+i}, v{T+12+i}")
            for i in range(4):
                e(f"v_add_f32 v{T+12+i}, 1.0, v{T+12+i}")
            for i in range(4):
                e(f"v_rcp_f32 v{T+12+i}, v{T+12+i}")
            for i in range(4):
                e(f"v_mul_f32 v{T+12+i}, v{T+4+i}, v{T+12+i}")
            for p in range(2):
                e(f"v_cvt_pk_bf16_f32 v{T+p}, v{T+12+2*p}, v{T+13+2*p}")
            for p in range(2):
                e(f"v_lshlrev_b32 v{T+4+2*p}, 16, v{T+p}")
                e(f"v_and_b32 v{T+5+2*p}, s34, v{T+p}")
            for i in range(4):
                e(f"v_mul_f32 v{T+12+i}, v{T+4+i}, v{T+8+i}")
            D = 242 + 2*ch
            for p in range(2):
                e(f"v_cvt_pk_bf16_f32 v{D+p}, v{T+12+2*p}, v{T+13+2*p}")
            e(f"buffer_store_dwordx2 {vr(D,2)}, v10, s[16:19], s24 offen")
            e("s_add_u32 s24, s24, 512")
    e("s_waitcnt vmcnt(0)")
    k.label("g1_end")
    e("s_endpgm")
    txt = k.text()
    txt = txt.replace("    s_mov_b32 s34, 0xffff0000\n", "    s_mov_b32 s34, 0xffff0000\n    v_mov_b32 v240, s33\n    v_mov_b32 v241, s32\n")
    return txt

def desc():
    return kernel_desc(NAME, 248, 40)
```

```python
from asmlib import *
from layout import *

NAME = "gemm2_kernel"
LDS_BYTES = 131072

def gen():
    k = K("g2")
    e = k.e
    ACC = 128
    def acc(j, nt): return ACC + 16 * (2*j + nt)
    ASET = [64, 80]
    BR = 32
    vA = 8
    vW = 12
    e("s_cmp_ge_u32 s2, 256")
    e("s_cbranch_scc1 g2_end")
    e("s_load_dwordx2 s[4:5], s[0:1], 48")
    e("s_load_dwordx2 s[8:9], s[0:1], 72")
    e("s_and_b32 s23, s2, 7")
    e("s_lshr_b32 s31, s2, 3")
    e("s_and_b32 s20, s23, 1")
    e("s_lshl_b32 s20, s20, 2")
    e("s_and_b32 s32, s31, 3")
    e("s_add_u32 s20, s20, s32")
    e("s_lshr_b32 s21, s23, 1")
    e("s_lshl_b32 s21, s21, 3")
    e("s_lshr_b32 s32, s31, 2")
    e("s_add_u32 s21, s21, s32")
    e("v_lshrrev_b32 v10, 6, v0")
    e("v_and_b32 v1, 63, v0")
    e("s_nop 0")
    e("v_readfirstlane_b32 s22, v10")
    e("s_waitcnt lgkmcnt(0)")
    e("s_mov_b32 s12, s4")
    e("s_mov_b32 s13, s5")
    e("s_mov_b32 s14, %d" % (3584 * 2048))
    e("s_mov_b32 s15, 0x00020000")
    e("s_mov_b32 s16, s8")
    e("s_mov_b32 s17, s9")
    e("s_mov_b32 s18, %d" % WS_BYTES)
    e("s_mov_b32 s19, 0x00020000")
    e("v_lshrrev_b32 v2, 4, v1")
    e("v_lshlrev_b32 v3, 2, v2")
    e("v_and_b32 v4, 15, v1")
    e("v_xor_b32 v4, v3, v4")
    e("v_lshlrev_b32 v4, 4, v4")
    e("v_lshlrev_b32 v2, 11, v2")
    e("s_lshl_b32 s23, s20, 8")
    e(f"v_add3_u32 v{vW}, v2, v4, s23")
    for j in range(1, 4):
        e(f"v_add_u32 v{vW+j}, {8192*j}, v{vW}")
    e("v_bfe_u32 v2, v1, 2, 2")
    e("v_bfe_u32 v3, v1, 4, 1")
    e("v_lshlrev_b32 v3, 1, v3")
    e("v_bfe_u32 v4, v1, 1, 1")
    e("v_add_u32 v3, v3, v4")
    e("v_and_b32 v4, 1, v1")
    e("v_lshlrev_b32 v4, 3, v4")
    e("v_lshrrev_b32 v5, 5, v1")
    e("v_lshlrev_b32 v5, 11, v5")
    e("s_lshl_b32 s23, s22, 14")
    e("v_add3_u32 v4, v4, v5, s23")
    e("v_lshlrev_b32 v6, 4, v2")
    e("v_add_u32 v6, v6, v3")
    for j in range(4):
        e(f"v_xor_b32 v7, {j}, v2")
        e("v_lshlrev_b32 v7, 2, v7")
        e("v_add_u32 v7, v7, v6")
        e("v_lshlrev_b32 v7, 4, v7")
        e(f"v_add_u32 v{vA+j}, v7, v4")
    e("v_lshlrev_b32 v6, 4, v1")
    e("s_mul_i32 s24, s22, %d" % (448 * 2048))
    e("s_lshl_b32 s25, s21, 1")
    e("s_mul_i32 s25, s25, 229376")
    e("s_mul_i32 s23, s22, %d" % (28 * 1024))
    e("s_add_u32 s25, s25, s23")
    e(f"s_add_u32 s25, s25, {H_OFF}")
    e("s_add_u32 s26, s25, 229376")
    e("s_lshl_b32 s27, s22, 14")
    e("s_mov_b32 s28, 0")

    def loads(slot, tag):
        for nt in range(2):
            k.vm(f"buffer_load_dwordx4 {vr(BR+8*slot+4*nt,4)}, v6, s[16:19], s{25+nt} offen offset:{1024*slot}", ("b", tag))
        for j in range(4):
            e(f"s_add_u32 m0, s27, {4096*slot + 1024*j}")
            e("s_nop 0")
            k.vm(f"buffer_load_dwordx4 v{vW+j}, s[12:15], s24 offen lds", ("w", tag))
        e(f"s_add_u32 s24, s24, {16*2048}")
        if slot == 3:
            e("s_add_u32 s25, s25, 4096")
            e("s_add_u32 s26, s26, 4096")
    def trreads(aset, slot, tag):
        for j in range(4):
            for hh in range(2):
                k.lg(f"ds_read_b64_tr_b16 {vr(aset+4*j+2*hh,2)}, v{vA+j} offset:{4096*slot + 1024*hh}", ("a", tag, j))
    loads(0, 0); loads(1, 1); loads(2, 2)
    for i in range(128):
        e(f"v_mov_b32 v{ACC+i}, 0")
    k.need(vm=("w", 0))
    trreads(ASET[0], 0, 0)
    e("s_mov_b32 s30, 7")
    start_vm = list(k.vmq); start_lg = list(k.lgq)
    k.label("g2_loop")
    for s in range(4):
        Acur = ASET[s % 2]; Anext = ASET[(s+1) % 2]
        loads((s+3) % 4, s+3)
        k.need(vm=[("w", s+1)])
        trreads(Anext, (s+1) % 4, s+1)
        k.need(vm=[("b", s)])
        for j in range(4):
            k.need(lg=("a", s, j))
            for nt in range(2):
                e(f"v_mfma_f32_32x32x16_bf16 {vr(acc(j,nt),16)}, {vr(Acur+4*j,4)}, {vr(BR+8*(s%4)+4*nt,4)}, {vr(acc(j,nt),16)}")
    def sh(t):
        if t[0] in ("w", "b"): return (t[0], t[1]-4)
        return ("a", t[1]-4, t[2])
    k.vmq = [sh(t) for t in k.vmq]; k.lgq = [sh(t) for t in k.lgq]
    assert k.vmq == start_vm and k.lgq == start_lg, (k.vmq, start_vm, k.lgq, start_lg)
    e("s_sub_u32 s30, s30, 1")
    e("s_cmp_lg_u32 s30, 0")
    e("s_cbranch_scc1 g2_loop")
    k.drain()
    k.nop(16)
    e("s_barrier")
    e("v_lshlrev_b32 v2, 4, v1")
    e("s_lshl_b32 s23, s22, 12")
    e("v_add_u32 v2, s23, v2")
    e("v_lshlrev_b32 v3, 4, v1")
    e("s_and_b32 s23, s22, 3")
    e("s_lshl_b32 s23, s23, 15")
    e("v_add_u32 v3, s23, v3")
    e("v_add_u32 v5, 0x10000, v2")
    for rnd in range(2):
        for T4 in range(4):
            T = 4*rnd + T4
            for q in range(4):
                e(f"ds_write_b128 v{2 if T4 < 2 else 5}, {vr(ACC+16*T+4*q,4)} offset:{32768*(T4%2) + 1024*q}")
        e("s_waitcnt lgkmcnt(0)")
        e("s_barrier")
        lab = k.newlabel("skip")
        e(f"s_cmp_lt_u32 s22, 4")
        e(f"s_cbranch_scc{1 if rnd == 1 else 0} {lab}")
        for src in range(8):
            dst = 64 if src == 0 else 80 + 16*((src-1) % 3)
            for q in range(4):
                e(f"ds_read_b128 {vr(dst+4*q,4)}, v3 offset:{4096*src + 1024*q}")
            if src >= 1:
                e("s_waitcnt lgkmcnt(0)")
                for i in range(16):
                    e(f"v_add_f32 v{64+i}, v{64+i}, v{dst+i}")
        e("s_waitcnt lgkmcnt(0)")
        k.label(lab)
        if rnd == 0:
            e("s_barrier")
    e("s_lshr_b32 s23, s22, 1")
    e("s_and_b32 s31, s22, 1")
    e("s_lshl_b32 s23, s23, 5")
    e("s_lshl_b32 s32, s20, 7")
    e("s_add_u32 s23, s23, s32")
    e("s_lshl_b32 s31, s31, 5")
    e("s_lshl_b32 s32, s21, 6")
    e("s_add_u32 s31, s31, s32")
    e("s_lshl_b32 s31, s31, 11")
    e("s_lshl_b32 s23, s23, 1")
    e("s_add_u32 s31, s31, s23")
    e(f"s_add_u32 s31, s31, {G_OFF}")
    e("v_and_b32 v2, 31, v1")
    e("v_lshlrev_b32 v2, 11, v2")
    e("v_lshrrev_b32 v3, 5, v1")
    e("v_lshlrev_b32 v3, 3, v3")
    e("v_add_u32 v2, v2, v3")
    e(f"s_mov_b32 s33, {f32hex(-1.4426950408889634)}")
    e("s_mov_b32 s34, 0xffff0000")
    for a in range(4):
        r0 = 64 + 4*a
        for p in range(2):
            e(f"v_cvt_pk_bf16_f32 v{80+p}, v{r0+2*p}, v{r0+2*p+1}")
        for p in range(2):
            e(f"v_lshlrev_b32 v{82+2*p}, 16, v{80+p}")
            e(f"v_and_b32 v{83+2*p}, s34, v{80+p}")
        for i in range(4):
            e(f"v_mul_f32 v{86+i}, s33, v{82+i}")
        for i in range(4):
            e(f"v_exp_f32 v{86+i}, v{86+i}")
        for i in range(4):
            e(f"v_add_f32 v{86+i}, 1.0, v{86+i}")
        for i in range(4):
            e(f"v_rcp_f32 v{86+i}, v{86+i}")
        for i in range(4):
            e(f"v_mul_f32 v{86+i}, v{82+i}, v{86+i}")
        for p in range(2):
            e(f"v_cvt_pk_bf16_f32 v{90+p}, v{86+2*p}, v{87+2*p}")
        e(f"buffer_store_dwordx2 v[90:91], v2, s[16:19], s31 offen offset:{16*a}")
    e("s_waitcnt vmcnt(0)")
    k.label("g2_end")
    e("s_endpgm")
    return k.text()

def desc():
    return kernel_desc(NAME, 256, 40)
```

```python
from asmlib import *
from layout import *
from fftlib import *

NAME = "k1_kernel"
NWT = 288
EX_BYTES = 5120
T_OFF = 8 * EX_BYTES
LDS_BYTES = T_OFF + 8 * 516 * 8

def wave_sum(k, v):
    e = k.e
    for mod in ["row_shr:1", "row_shr:2", "row_shr:4", "row_shr:8"]:
        e("s_nop 1")
        e(f"v_add_f32_dpp v{v}, v{v}, v{v} {mod} row_mask:0xf bank_mask:0xf")
    e("s_nop 1")
    e(f"v_add_f32_dpp v{v}, v{v}, v{v} row_bcast:15 row_mask:0xa bank_mask:0xf")
    e("s_nop 1")
    e(f"v_add_f32_dpp v{v}, v{v}, v{v} row_bcast:31 row_mask:0xc bank_mask:0xf")
    e("s_nop 1")

def tw_srd(k, s):
    e = k.e
    e(f"s_getpc_b64 s[{s}:{s+1}]")
    e(f"s_add_u32 s{s}, s{s}, twtab@rel32@lo+4")
    e(f"s_addc_u32 s{s+1}, s{s+1}, twtab@rel32@hi+12")
    e(f"s_mov_b32 s{s+2}, 16384")
    e(f"s_mov_b32 s{s+3}, 0x00020000")

def gen():
    k = K("k1")
    e = k.e
    e(f"s_cmp_ge_u32 s2, {256+NWT}")
    e("s_cbranch_scc1 k1_end")
    e("s_load_dwordx2 s[4:5], s[0:1], 0")
    e("s_load_dwordx4 s[8:11], s[0:1], 8")
    e("s_load_dwordx2 s[6:7], s[0:1], 72")
    e("v_and_b32 v1, 63, v0")
    e("v_lshrrev_b32 v2, 6, v0")
    e("s_nop 0")
    e("v_readfirstlane_b32 s22, v2")
    e("s_waitcnt lgkmcnt(0)")
    e("s_mov_b32 s16, s6"); e("s_mov_b32 s17, s7"); e(f"s_mov_b32 s18, {WS_BYTES}"); e("s_mov_b32 s19, 0x00020000")
    e("s_cmp_ge_u32 s2, 256")
    e("s_cbranch_scc1 k1_wt")
    e("s_mov_b32 s12, s4"); e("s_mov_b32 s13, s5"); e(f"s_mov_b32 s14, {2048*2048}"); e("s_mov_b32 s15, 0x00020000")
    tw_srd(k, 24)
    e("s_and_b32 s20, s2, 7")
    e("s_lshl_b32 s20, s20, 5")
    e("s_lshr_b32 s21, s2, 3")
    e("s_add_u32 s20, s20, s21")
    e("s_lshl_b32 s20, s20, 3")
    e("s_add_u32 s21, s20, s22")
    e("s_lshl_b32 s23, s21, 11")
    e("v_lshlrev_b32 v3, 2, v1")
    RAW = 16
    for n1 in range(8):
        k.vm(f"buffer_load_dword v{RAW+n1}, v3, s[12:15], s23 offen offset:{256*n1}", ("x", n1))
    TW1 = 96; TW2 = 112
    for a in range(1, 8):
        e(f"v_mul_u32_u24 v4, {4*a}, v1")
        e("v_and_b32 v4, 2047, v4")
        e("v_lshlrev_b32 v4, 3, v4")
        k.vm(f"buffer_load_dwordx2 {vr(TW1+2*(a-1),2)}, v4, s[24:27], 0 offen", ("tw1", a))
    e("v_and_b32 v5, 7, v1")
    for b in range(1, 8):
        e(f"v_mul_u32_u24 v4, {32*b}, v5")
        e("v_and_b32 v4, 2047, v4")
        e("v_lshlrev_b32 v4, 3, v4")
        k.vm(f"buffer_load_dwordx2 {vr(TW2+2*(b-1),2)}, v4, s[24:27], 0 offen", ("tw2", b))
    Z0 = 32
    pool = Pool(48, 96)
    k.need(vm=("x", 7))
    e("s_mov_b32 s30, 0xffff0000")
    for n1 in range(8):
        e(f"v_lshlrev_b32 v{Z0+2*n1}, 16, v{RAW+n1}")
        e(f"v_and_b32 v{Z0+2*n1+1}, s30, v{RAW+n1}")
    e(f"v_add_f32 v6, v{Z0}, v{Z0+1}")
    e(f"v_add_f32 v7, v{Z0+2}, v{Z0+3}")
    for i in range(4, 16, 2):
        e(f"v_add_f32 v6, v6, v{Z0+i}")
        e(f"v_add_f32 v7, v7, v{Z0+i+1}")
    e("v_add_f32 v6, v6, v7")
    wave_sum(k, 6)
    e("v_readlane_b32 s31, v6, 63")
    e(f"s_mov_b32 s32, {f32hex(1.0/1024)}")
    e("v_mov_b32 v8, s32")
    e("v_mul_f32 v8, s31, v8")
    e(f"v_sub_f32 v9, v{Z0}, v8"); e("v_mul_f32 v6, v9, v9")
    e(f"v_sub_f32 v9, v{Z0+1}, v8"); e("v_mul_f32 v7, v9, v9")
    for i in range(2, 16, 2):
        e(f"v_sub_f32 v9, v{Z0+i}, v8"); e("v_fmac_f32 v6, v9, v9")
        e(f"v_sub_f32 v10, v{Z0+i+1}, v8"); e("v_fmac_f32 v7, v10, v10")
    e("v_add_f32 v6, v6, v7")
    wave_sum(k, 6)
    e("v_readlane_b32 s31, v6, 63")
    e("v_mov_b32 v9, s32")
    e("v_mul_f32 v9, s31, v9")
    e("v_cvt_pk_bf16_f32 v8, v8, v8"); e("v_lshlrev_b32 v8, 16, v8")
    e("v_cvt_pk_bf16_f32 v9, v9, v9"); e("v_lshlrev_b32 v9, 16, v9")
    e(f"v_add_f32 v9, {f32hex(1e-5)}, v9")
    e("v_cvt_pk_bf16_f32 v9, v9, v9"); e("v_lshlrev_b32 v9, 16, v9")
    e("v_sqrt_f32 v10, v9")
    e("s_nop 0")
    e("v_rcp_f32 v11, v10")
    e("v_fma_f32 v12, -v10, v10, v9")
    e("v_mul_f32 v11, 0.5, v11")
    e("v_fma_f32 v10, v12, v11, v10")
    e("v_cvt_pk_bf16_f32 v10, v10, v10"); e("v_lshlrev_b32 v10, 16, v10")
    e("v_rcp_f32 v11, v10")
    e("s_nop 0")
    e("v_fma_f32 v12, -v10, v11, 1.0")
    e("v_fma_f32 v11, v12, v11, v11")
    XP = 16
    for n1 in range(8):
        a, b = Z0 + 2*n1, Z0 + 2*n1 + 1
        e(f"v_sub_f32 v{a}, v{a}, v8")
        e(f"v_sub_f32 v{b}, v{b}, v8")
        e(f"v_cvt_pk_bf16_f32 v13, v{a}, v{b}")
        e(f"v_lshlrev_b32 v{a}, 16, v13")
        e(f"v_and_b32 v{b}, s30, v13")
        e(f"v_mul_f32 v13, v{a}, v11")
        e(f"v_mul_f32 v14, v{b}, v11")
        e(f"v_fma_f32 v15, -v13, v10, v{a}")
        e(f"v_fma_f32 v12, -v14, v10, v{b}")
        e(f"v_fma_f32 v13, v15, v11, v13")
        e(f"v_fma_f32 v14, v12, v11, v14")
        e(f"v_cvt_pk_bf16_f32 v{XP+n1}, v13, v14")
        e(f"v_lshlrev_b32 v{a}, 16, v{XP+n1}")
        e(f"v_and_b32 v{b}, s30, v{XP+n1}")
    e("v_lshrrev_b32 v4, 2, v1"); e("v_lshlrev_b32 v4, 9, v4")
    e("v_and_b32 v5, 3, v1"); e("v_lshlrev_b32 v5, 2, v5")
    e("v_add_u32 v4, v4, v5")
    e("s_lshr_b32 s31, s21, 5"); e("s_lshl_b32 s31, s31, 16")
    e("s_and_b32 s32, s21, 31"); e("s_lshl_b32 s32, s32, 4")
    e("s_add_u32 s31, s31, s32")
    if XN_OFF: e(f"s_add_u32 s31, s31, {XN_OFF}")
    for n1 in range(8):
        k.vm(f"buffer_store_dword v{XP+n1}, v4, s[16:19], s31 offen", ("xs", n1))
        if n1 < 7: e("s_add_u32 s31, s31, 8192")
    z = [[Z0+2*n1, Z0+2*n1+1] for n1 in range(8)]
    y = dft(k, pool, z, -1)
    k.need(vm=("tw1", 7))
    for a in range(1, 8):
        y[a] = cmul_reg(k, pool, y[a], [TW1+2*(a-1), TW1+2*(a-1)+1])
    e(f"s_mul_i32 s33, s22, {EX_BYTES}")
    e("v_lshlrev_b32 v4, 3, v1")
    e("v_add_u32 v4, s33, v4")
    for a in range(8):
        k.lg(f"ds_write_b64 v4, {vr(y[a][0],2)} offset:{a*72*8}", ("e1w", a))
        pool.release2(y[a])
    e("v_lshrrev_b32 v5, 3, v1"); e("v_mul_u32_u24 v5, 72, v5")
    e("v_and_b32 v6, 7, v1"); e("v_add_u32 v5, v5, v6")
    e("v_lshlrev_b32 v5, 3, v5"); e("v_add_u32 v5, s33, v5")
    k.need(lg=("e1w", 7))
    x2 = []
    for n2 in range(8):
        c = pool.alloc2(); x2.append(c)
        k.lg(f"ds_read_b64 {vr(c[0],2)}, v5 offset:{n2*64}", ("e1r", n2))
    k.need(lg=("e1r", 7))
    y = dft(k, pool, x2, -1)
    k.need(vm=("tw2", 7))
    for b in range(1, 8):
        y[b] = cmul_reg(k, pool, y[b], [TW2+2*(b-1), TW2+2*(b-1)+1])
    e("v_and_b32 v6, 7, v1"); e("v_mul_u32_u24 v6, 74, v6")
    e("v_lshrrev_b32 v7, 3, v1"); e("v_add_u32 v6, v6, v7")
    e("v_lshlrev_b32 v6, 3, v6"); e("v_add_u32 v6, s33, v6")
    for b in range(8):
        k.lg(f"ds_write_b64 v6, {vr(y[b][0],2)} offset:{b*64}", ("e2w", b))
        pool.release2(y[b])
    k.need(lg=("e2w", 7))
    x3 = []
    for n3 in range(8):
        c = pool.alloc2(); x3.append(c)
        k.lg(f"ds_read_b64 {vr(c[0],2)}, v4 offset:{n3*74*8}", ("e2r", n3))
    k.need(lg=("e2r", 7))
    y = dft(k, pool, x3, -1)
    e(f"s_mul_i32 s34, s22, {516*8}")
    e(f"s_add_u32 s34, s34, {T_OFF}")
    e("v_lshlrev_b32 v7, 3, v1"); e("v_add_u32 v7, s34, v7")
    for c in range(8):
        k.lg(f"ds_write_b64 v7, {vr(y[c][0],2)} offset:{c*512}", ("tw", c))
    k.need(lg=("tw", 7))
    e("s_barrier")
    e("v_lshrrev_b32 v4, 2, v0")
    e("v_and_b32 v5, 3, v0")
    e(f"v_mul_u32_u24 v6, {2*516*8}, v5")
    e("v_lshlrev_b32 v7, 3, v4")
    e(f"v_add3_u32 v6, v6, v7, {T_OFF}") if False else None
    e("v_add_u32 v6, v6, v7")
    e(f"v_add_u32 v6, {T_OFF}, v6")
    for it in range(4):
        k.lg(f"ds_read_b64 {vr(48+4*it,2)}, v6 offset:{it*1024}", ("tr", it))
        k.lg(f"ds_read_b64 {vr(50+4*it,2)}, v6 offset:{it*1024 + 516*8}", ("tr", it))
    e("v_lshlrev_b32 v4, 14, v4")
    e("v_lshlrev_b32 v5, 4, v5")
    e("v_add_u32 v4, v4, v5")
    e("s_lshl_b32 s35, s20, 3")
    e(f"s_add_u32 s35, s35, {ZT_OFF}")
    for it in range(4):
        k.need(lg=("tr", it))
        k.vm(f"buffer_store_dwordx4 {vr(48+4*it,4)}, v4, s[16:19], s35 offen", ("zs", it))
        if it < 3: e(f"s_add_u32 s35, s35, {128*16384}")
    e("s_waitcnt vmcnt(0)")
    e("s_endpgm")
    k.vmq = []; k.lgq = []
    k.label("k1_wt")
    e("s_sub_u32 s20, s2, 256")
    e("s_mul_i32 s21, s20, 7282"); e("s_lshr_b32 s21, s21, 16")
    e("s_mul_i32 s23, s21, 9"); e("s_sub_u32 s20, s20, s23")
    e("s_mov_b32 s12, s8"); e("s_mov_b32 s13, s9"); e(f"s_mov_b32 s14, {2048*1026}"); e("s_mov_b32 s15, 0x00020000")
    e("s_mov_b32 s24, s10"); e("s_mov_b32 s25, s11"); e(f"s_mov_b32 s26, {2048*1026}"); e("s_mov_b32 s27, 0x00020000")
    e("v_and_b32 v2, 63, v0")
    e("v_lshrrev_b32 v3, 6, v0")
    e("v_mul_u32_u24 v4, 1026, v3")
    e("v_lshlrev_b32 v5, 1, v2")
    e("v_add_u32 v4, v4, v5")
    e("s_mul_i32 s30, s21, %d" % (64*1026))
    e("s_lshl_b32 s31, s20, 7")
    e("s_add_u32 s30, s30, s31")
    for it in range(8):
        k.vm(f"buffer_load_ushort v{16+it}, v4, s[12:15], s30 offen", ("wr", it))
        k.vm(f"buffer_load_ushort v{24+it}, v4, s[24:27], s30 offen", ("wi", it))
        if it < 7: e(f"s_add_u32 s30, s30, {8*1026}")
    e("v_mul_u32_u24 v6, 260, v3")
    e("v_lshlrev_b32 v7, 2, v2")
    e("v_add_u32 v6, v6, v7")
    for it in range(8):
        k.need(vm=("wi", it))
        e(f"v_lshlrev_b32 v{24+it}, 16, v{24+it}")
        e(f"v_or_b32 v{16+it}, v{16+it}, v{24+it}")
        k.lg(f"ds_write_b32 v6, v{16+it} offset:{it*8*260}", ("lw", it))
    k.need(lg=("lw", 7))
    e("s_barrier")
    e("v_mul_u32_u24 v6, 260, v2")
    e("v_lshlrev_b32 v7, 2, v3")
    e("v_add_u32 v6, v6, v7")
    for it in range(8):
        k.lg(f"ds_read_b32 v{16+it}, v6 offset:{it*32}", ("lr", it))
    e("v_lshlrev_b32 v4, 13, v3")
    e("v_lshlrev_b32 v5, 2, v2")
    e("v_add_u32 v4, v4, v5")
    e("s_lshl_b32 s30, s20, 19")
    e("s_lshl_b32 s31, s21, 8")
    e("s_add_u32 s30, s30, s31")
    e(f"s_add_u32 s30, s30, {WT_OFF}")
    e("s_lshl_b32 s31, s20, 6")
    for it in range(8):
        k.need(lg=("lr", it))
        e(f"v_add_u32 v8, {8*it}, v3")
        e("v_add_u32 v8, s31, v8")
        e("v_cmp_ge_u32 vcc, 512, v8")
        e("s_and_saveexec_b64 s[32:33], vcc")
        k.vm(f"buffer_store_dword v{16+it}, v4, s[16:19], s30 offen", ("ws", it))
        e("s_mov_b64 exec, s[32:33]")
        if it < 7: e(f"s_add_u32 s30, s30, {8*8192}")
    e("s_waitcnt vmcnt(0)")
    k.label("k1_end")
    e("s_endpgm")
    return k.text()

def desc():
    return kernel_desc(NAME, 128, 40)
```

```python
from asmlib import *
from layout import *
from fftlib import *
from k1 import tw_srd

NAME = "k2_kernel"
SELREG = 17408
REG2 = 2 * SELREG
LDS_BYTES = 2 * REG2

def gen():
    k = K("k2")
    e = k.e
    e("s_cmp_ge_u32 s2, 257")
    e("s_cbranch_scc1 k2_end")
    e("s_load_dwordx2 s[6:7], s[0:1], 72")
    e("v_lshrrev_b32 v2, 6, v0")
    e("s_nop 0")
    e("v_readfirstlane_b32 s22, v2")
    tw_srd(k, 24)
    e("s_waitcnt lgkmcnt(0)")
    e("s_mov_b32 s16, s6"); e("s_mov_b32 s17, s7"); e(f"s_mov_b32 s18, {WS_BYTES}"); e("s_mov_b32 s19, 0x00020000")
    e("s_sub_u32 s20, 512, s2")
    e("s_and_b32 s21, s20, 511")
    e("s_lshr_b32 s23, s22, 1")
    e("s_cmp_eq_u32 s23, 0")
    e("s_cselect_b32 s28, s2, s21")
    e("s_lshl_b32 s28, s28, 14")
    e(f"s_add_u32 s28, s28, {ZT_OFF}")
    e("v_and_b32 v3, 127, v0")
    e("v_lshlrev_b32 v4, 3, v3")
    TW1F, TW2F, TW1I, TW2I = 16, 46, 76, 90
    WREG = 120
    pool = Pool(152, 256)
    x = [pool.alloc2() for _ in range(16)]
    for n1 in range(16):
        k.vm(f"buffer_load_dwordx2 {vr(x[n1][0],2)}, v4, s[16:19], s28 offen offset:{1024*(n1%4)}", ("x", n1))
        if n1 % 4 == 3 and n1 < 15: e("s_add_u32 s28, s28, 4096")
    def twload(dst, mulconst, vidx, tag):
        e(f"v_mul_u32_u24 v5, {mulconst}, v{vidx}")
        e("v_and_b32 v5, 2047, v5")
        e("v_lshlrev_b32 v5, 3, v5")
        k.vm(f"buffer_load_dwordx2 {vr(dst,2)}, v5, s[24:27], 0 offen", tag)
    for a in range(1, 16):
        twload(TW1F + 2*(a-1), a, 3, ("tw1f", a))
    e("v_and_b32 v6, 7, v0")
    for b in range(1, 16):
        twload(TW2F + 2*(b-1), 16*b, 6, ("tw2f", b))
    for al in range(1, 8):
        twload(TW1I + 2*(al-1), al, 0, ("tw1i", al))
    e("v_and_b32 v7, 15, v0")
    for be in range(1, 16):
        twload(TW2I + 2*(be-1), 8*be, 7, ("tw2i", be))
    e("v_lshlrev_b32 v8, 2, v0")
    e("s_lshl_b32 s29, s2, 13")
    e(f"s_add_u32 s29, s29, {WT_OFF}")
    e("s_lshl_b32 s30, s20, 13")
    e(f"s_add_u32 s30, s30, {WT_OFF}")
    for c in range(8):
        k.vm(f"buffer_load_dword v{WREG+c}, v8, s[16:19], s29 offen offset:{1024*(c%4)}", ("wa", c))
        if c == 3: e("s_add_u32 s29, s29, 4096")
    for c in range(8):
        e(f"v_sub_u32 v9, {2048-256*c}, v0")
        e("v_and_b32 v9, 2047, v9")
        e("v_lshlrev_b32 v9, 2, v9")
        k.vm(f"buffer_load_dword v{WREG+8+c}, v9, s[16:19], s30 offen", ("wb", c))
    e("s_lshl_b32 s31, s2, 4")
    e("v_mov_b32 v9, s31")
    k.vm("buffer_load_dwordx2 v[10:11], v9, s[24:27], 0 offen", ("wk", 0))
    e("s_cmp_eq_u32 s23, 0")
    e("s_cselect_b32 s31, 1.0, -1.0")
    e("v_mov_b32 v12, s31")
    e(f"s_mul_i32 s32, s23, {SELREG}")
    k.need(vm=("x", 15))
    for n1 in range(16):
        e(f"v_mul_f32 v{x[n1][1]}, v12, v{x[n1][1]}")
    y = dft(k, pool, x, -1)
    k.need(vm=("tw1f", 15))
    for a in range(1, 16):
        y[a] = cmul_reg(k, pool, y[a], [TW1F+2*(a-1), TW1F+2*(a-1)+1])
    e("v_add_u32 v13, s32, v4")
    for a in range(16):
        k.lg(f"ds_write_b64 v13, {vr(y[a][0],2)} offset:{a*136*8}", ("e1w", a)); pool.release2(y[a])
    e("v_lshrrev_b32 v14, 3, v3"); e("v_mul_u32_u24 v14, 136, v14"); e("v_add_u32 v14, v14, v6")
    e("v_lshlrev_b32 v14, 3, v14"); e("v_add_u32 v14, s32, v14")
    k.need(lg=("e1w", 15))
    e("s_barrier")
    x = []
    for n2 in range(16):
        c = pool.alloc2(); x.append(c)
        k.lg(f"ds_read_b64 {vr(c[0],2)}, v14 offset:{n2*64}", ("e1r", n2))
    k.need(lg=("e1r", 15))
    y = dft(k, pool, x, -1)
    k.need(vm=("tw2f", 15))
    for b in range(1, 16):
        y[b] = cmul_reg(k, pool, y[b], [TW2F+2*(b-1), TW2F+2*(b-1)+1])
    e("v_mul_u32_u24 v13, 264, v6"); e("v_lshrrev_b32 v15, 3, v3"); e("v_add_u32 v13, v13, v15")
    e("v_lshlrev_b32 v13, 3, v13"); e("v_add_u32 v13, s32, v13"); e(f"v_add_u32 v13, {REG2}, v13")
    for b in range(16):
        k.lg(f"ds_write_b64 v13, {vr(y[b][0],2)} offset:{b*128}", ("e2w", b)); pool.release2(y[b])
    e("v_lshlrev_b32 v14, 3, v0"); e(f"v_add_u32 v14, {REG2}, v14")
    k.need(lg=("e2w", 15))
    e("s_barrier")
    xp = []; xq = []
    for n3 in range(8):
        c = pool.alloc2(); xp.append(c)
        k.lg(f"ds_read_b64 {vr(c[0],2)}, v14 offset:{n3*264*8}", ("e2r", n3))
        c = pool.alloc2(); xq.append(c)
        k.lg(f"ds_read_b64 {vr(c[0],2)}, v14 offset:{SELREG + n3*264*8}", ("e2r", n3))
    k.need(lg=("e2r", 7))
    P = dft(k, pool, xp, -1)
    Q = dft(k, pool, xq, -1)
    k.need(vm=[("wk", 0)])
    e("v_sub_f32 v9, 0, v10")
    e("s_mov_b32 s33, 0xffff0000")
    lab_gen = "k2_wgen"
    e("s_cmp_lg_u32 s2, 0")
    e(f"s_cbranch_scc1 {lab_gen}")
    sv_vm = list(k.vmq); sv_lg = list(k.lgq)
    e(f"s_mov_b32 s29, {WT_OFF}")
    for c in range(8):
        e(f"v_sub_u32 v5, {2048-256*c}, v0")
        e("v_and_b32 v5, 2047, v5")
        e("v_lshlrev_b32 v5, 2, v5")
        e(f"buffer_load_dword v{WREG+16+c}, v5, s[16:19], s29 offen")
    e(f"s_mov_b32 s29, {WT_OFF + 512*8192}")
    for c in range(8):
        e(f"buffer_load_dword v{WREG+24+c}, v8, s[16:19], s29 offen offset:{1024*(c%4)}")
        if c == 3: e("s_add_u32 s29, s29, 4096")
    e("s_waitcnt vmcnt(0)")
    k.vmq = []; k.lgq = sv_lg
    WF = TW1F
    for c in range(8):
        e(f"v_lshlrev_b32 v5, 16, v{WREG+c}"); e(f"v_and_b32 v13, s33, v{WREG+c}")
        e(f"v_lshlrev_b32 v14, 16, v{WREG+16+c}"); e(f"v_and_b32 v15, s33, v{WREG+16+c}")
        e("v_add_f32 v5, v5, v14"); e("v_sub_f32 v13, v13, v15")
        e(f"v_mul_f32 v{WF+4*c}, 0.5, v5"); e(f"v_mul_f32 v{WF+4*c+1}, 0.5, v13")
        e(f"v_lshlrev_b32 v5, 16, v{WREG+24+c}"); e(f"v_and_b32 v13, s33, v{WREG+24+c}")
        e(f"v_lshlrev_b32 v14, 16, v{WREG+8+c}"); e(f"v_and_b32 v15, s33, v{WREG+8+c}")
        e("v_add_f32 v5, v5, v14"); e("v_sub_f32 v13, v13, v15")
        e(f"v_mul_f32 v{WF+4*c+2}, 0.5, v5"); e(f"v_mul_f32 v{WF+4*c+3}, 0.5, v13")
    e("s_branch k2_wdone")
    k.label(lab_gen)
    k.vmq = sv_vm
    k.need(vm=[("wa", 7), ("wb", 7)])
    for c in range(8):
        e(f"v_lshlrev_b32 v{WF+4*c}, 16, v{WREG+c}"); e(f"v_and_b32 v{WF+4*c+1}, s33, v{WREG+c}")
        e(f"v_lshlrev_b32 v{WF+4*c+2}, 16, v{WREG+8+c}"); e(f"v_and_b32 v{WF+4*c+3}, s33, v{WREG+8+c}")
        e(f"v_sub_f32 v{WF+4*c+3}, 0, v{WF+4*c+3}")
    k.label("k2_wdone")
    k.vmq = []
    O1 = []; O2 = []
    for c in range(8):
        p, q = P[c], Q[c]
        S_, D_ = bfly(k, pool, p, q)
        T_ = cmul_reg(k, pool, D_, [11, 9])
        U_, V_ = bfly(k, pool, S_, T_)
        A_ = cmul_reg(k, pool, U_, [WF+4*c, WF+4*c+1])
        B_ = cmul_reg(k, pool, V_, [WF+4*c+2, WF+4*c+3])
        G1, G2 = bfly(k, pool, A_, B_)
        G2 = cmul_reg(k, pool, G2, [11, 10])
        o1, o2 = bfly(k, pool, G1, G2)
        O1.append(o1); O2.append(o2)
    y1 = dft(k, pool, O1, +1)
    y2 = dft(k, pool, O2, +1)
    e("s_waitcnt vmcnt(0)")
    for al in range(1, 8):
        y1[al] = cmul_reg(k, pool, y1[al], [TW1I+2*(al-1), TW1I+2*(al-1)+1], conj=True)
        y2[al] = cmul_reg(k, pool, y2[al], [TW1I+2*(al-1), TW1I+2*(al-1)+1], conj=True)
    e("v_lshlrev_b32 v13, 3, v0")
    for al in range(8):
        k.lg(f"ds_write_b64 v13, {vr(y1[al][0],2)} offset:{al*272*8}", ("e3w", al)); pool.release2(y1[al])
        k.lg(f"ds_write_b64 v13, {vr(y2[al][0],2)} offset:{SELREG + al*272*8}", ("e3w", al)); pool.release2(y2[al])
    e("v_lshrrev_b32 v14, 4, v3"); e("v_mul_u32_u24 v14, 272, v14"); e("v_add_u32 v14, v14, v7")
    e("v_lshlrev_b32 v14, 3, v14"); e("v_add_u32 v14, s32, v14")
    k.need(lg=("e3w", 7))
    e("s_barrier")
    x = []
    for k1 in range(16):
        c = pool.alloc2(); x.append(c)
        k.lg(f"ds_read_b64 {vr(c[0],2)}, v14 offset:{k1*128}", ("e3r", k1))
    k.need(lg=("e3r", 15))
    y = dft(k, pool, x, +1)
    for be in range(1, 16):
        y[be] = cmul_reg(k, pool, y[be], [TW2I+2*(be-1), TW2I+2*(be-1)+1], conj=True)
    e("v_mul_u32_u24 v13, 130, v7"); e("v_lshrrev_b32 v15, 4, v3"); e("v_add_u32 v13, v13, v15")
    e("v_lshlrev_b32 v13, 3, v13"); e("v_add_u32 v13, s32, v13"); e(f"v_add_u32 v13, {REG2}, v13")
    for be in range(16):
        k.lg(f"ds_write_b64 v13, {vr(y[be][0],2)} offset:{be*64}", ("e4w", be)); pool.release2(y[be])
    e("v_add_u32 v14, s32, v4"); e(f"v_add_u32 v14, {REG2}, v14")
    k.need(lg=("e4w", 15))
    e("s_barrier")
    x = []
    for k2 in range(16):
        c = pool.alloc2(); x.append(c)
        k.lg(f"ds_read_b64 {vr(c[0],2)}, v14 offset:{k2*130*8}", ("e4r", k2))
    k.need(lg=("e4r", 15))
    y = dft(k, pool, x, +1)
    for g in range(16):
        e(f"v_mul_f32 v{y[g][1]}, v12, v{y[g][1]}")
    e("s_cmp_eq_u32 s23, 0")
    e("s_cbranch_scc1 k2_store")
    e("s_cmp_eq_u32 s2, 0")
    e("s_cbranch_scc1 k2_end")
    e("s_cmp_eq_u32 s2, 256")
    e("s_cbranch_scc1 k2_end")
    k.label("k2_store")
    e("s_cmp_eq_u32 s23, 0")
    e("s_cselect_b32 s28, s2, s21")
    e("s_lshl_b32 s28, s28, 14")
    e(f"s_add_u32 s28, s28, {ZPT_OFF}")
    for g in range(16):
        e(f"buffer_store_dwordx2 {vr(y[g][0],2)}, v4, s[16:19], s28 offen offset:{1024*(g%4)}")
        if g % 4 == 3 and g < 15: e("s_add_u32 s28, s28, 4096")
    e("s_waitcnt vmcnt(0)")
    k.label("k2_end")
    e("s_endpgm")
    return k.text()

def desc():
    return kernel_desc(NAME, 256, 40)
```

```python
from asmlib import *
from layout import *
from fftlib import *
from k1 import tw_srd

NAME = "k3_kernel"
EX_BYTES = 5120
T_OFF = 8 * EX_BYTES
LDS_BYTES = T_OFF + 8 * 516 * 8

def gen():
    k = K("k3")
    e = k.e
    e("s_cmp_ge_u32 s2, 256")
    e("s_cbranch_scc1 k3_end")
    e("s_load_dwordx2 s[4:5], s[0:1], 0")
    e("s_load_dwordx2 s[8:9], s[0:1], 56")
    e("s_load_dwordx2 s[6:7], s[0:1], 72")
    e("v_and_b32 v1, 63, v0")
    e("v_lshrrev_b32 v2, 6, v0")
    e("s_nop 0")
    e("v_readfirstlane_b32 s22, v2")
    tw_srd(k, 24)
    e("s_waitcnt lgkmcnt(0)")
    e("s_mov_b32 s16, s6"); e("s_mov_b32 s17, s7"); e(f"s_mov_b32 s18, {WS_BYTES}"); e("s_mov_b32 s19, 0x00020000")
    e("s_mov_b32 s12, s4"); e("s_mov_b32 s13, s5"); e(f"s_mov_b32 s14, {2048*2048}"); e("s_mov_b32 s15, 0x00020000")
    e("s_mov_b32 s36, s8"); e("s_mov_b32 s37, s9"); e(f"s_mov_b32 s38, {2048*2048}"); e("s_mov_b32 s39, 0x00020000")
    e("s_and_b32 s20, s2, 7"); e("s_lshl_b32 s20, s20, 5"); e("s_lshr_b32 s21, s2, 3"); e("s_add_u32 s20, s20, s21")
    e("s_lshl_b32 s20, s20, 3")
    e("s_add_u32 s21, s20, s22")
    e("v_lshrrev_b32 v4, 2, v0"); e("v_and_b32 v5, 3, v0")
    e("v_lshlrev_b32 v6, 14, v4"); e("v_lshlrev_b32 v7, 4, v5"); e("v_add_u32 v6, v6, v7")
    e("s_lshl_b32 s35, s20, 3"); e(f"s_add_u32 s35, s35, {ZPT_OFF}")
    for it in range(4):
        k.vm(f"buffer_load_dwordx4 {vr(48+4*it,4)}, v6, s[16:19], s35 offen", ("z", it))
        if it < 3: e(f"s_add_u32 s35, s35, {128*16384}")
    e("v_lshlrev_b32 v3, 2, v1")
    e("s_lshl_b32 s23, s21, 11")
    e(f"s_add_u32 s31, s23, {G_OFF}")
    XR, GR = 16, 24
    for c in range(8):
        k.vm(f"buffer_load_dword v{XR+c}, v3, s[12:15], s23 offen offset:{256*c}", ("xg", c))
        k.vm(f"buffer_load_dword v{GR+c}, v3, s[16:19], s31 offen offset:{256*c}", ("xg", c))
    TW1 = 96; TW2 = 112
    for a in range(1, 8):
        e(f"v_mul_u32_u24 v8, {4*a}, v1"); e("v_and_b32 v8, 2047, v8"); e("v_lshlrev_b32 v8, 3, v8")
        k.vm(f"buffer_load_dwordx2 {vr(TW1+2*(a-1),2)}, v8, s[24:27], 0 offen", ("tw1", a))
    e("v_and_b32 v9, 7, v1")
    for b in range(1, 8):
        e(f"v_mul_u32_u24 v8, {32*b}, v9"); e("v_and_b32 v8, 2047, v8"); e("v_lshlrev_b32 v8, 3, v8")
        k.vm(f"buffer_load_dwordx2 {vr(TW2+2*(b-1),2)}, v8, s[24:27], 0 offen", ("tw2", b))
    e(f"v_mul_u32_u24 v6, {2*516*8}, v5"); e("v_lshlrev_b32 v7, 3, v4"); e("v_add_u32 v6, v6, v7"); e(f"v_add_u32 v6, {T_OFF}, v6")
    for it in range(4):
        k.need(vm=("z", it))
        k.lg(f"ds_write_b64 v6, {vr(48+4*it,2)} offset:{it*1024}", ("tw", it))
        k.lg(f"ds_write_b64 v6, {vr(50+4*it,2)} offset:{it*1024 + 516*8}", ("tw", it))
    k.need(lg=("tw", 3))
    e("s_barrier")
    pool = Pool(32, 96)
    e(f"s_mul_i32 s34, s22, {516*8}"); e(f"s_add_u32 s34, s34, {T_OFF}")
    e("v_lshlrev_b32 v4, 3, v1")
    e("v_add_u32 v7, s34, v4")
    x = []
    for k1 in range(8):
        c = pool.alloc2(); x.append(c)
        k.lg(f"ds_read_b64 {vr(c[0],2)}, v7 offset:{k1*512}", ("r0", k1))
    k.need(lg=("r0", 7))
    y = dft(k, pool, x, +1)
    k.need(vm=("tw1", 7))
    for a in range(1, 8):
        y[a] = cmul_reg(k, pool, y[a], [TW1+2*(a-1), TW1+2*(a-1)+1], conj=True)
    e(f"s_mul_i32 s33, s22, {EX_BYTES}")
    e("v_add_u32 v4, s33, v4")
    for a in range(8):
        k.lg(f"ds_write_b64 v4, {vr(y[a][0],2)} offset:{a*72*8}", ("e1w", a)); pool.release2(y[a])
    e("v_lshrrev_b32 v5, 3, v1"); e("v_mul_u32_u24 v5, 72, v5"); e("v_add_u32 v5, v5, v9")
    e("v_lshlrev_b32 v5, 3, v5"); e("v_add_u32 v5, s33, v5")
    k.need(lg=("e1w", 7))
    x = []
    for n2 in range(8):
        c = pool.alloc2(); x.append(c)
        k.lg(f"ds_read_b64 {vr(c[0],2)}, v5 offset:{n2*64}", ("e1r", n2))
    k.need(lg=("e1r", 7))
    y = dft(k, pool, x, +1)
    k.need(vm=("tw2", 7))
    for b in range(1, 8):
        y[b] = cmul_reg(k, pool, y[b], [TW2+2*(b-1), TW2+2*(b-1)+1], conj=True)
    e("v_mul_u32_u24 v6, 74, v9"); e("v_lshrrev_b32 v7, 3, v1"); e("v_add_u32 v6, v6, v7")
    e("v_lshlrev_b32 v6, 3, v6"); e("v_add_u32 v6, s33, v6")
    for b in range(8):
        k.lg(f"ds_write_b64 v6, {vr(y[b][0],2)} offset:{b*64}", ("e2w", b)); pool.release2(y[b])
    k.need(lg=("e2w", 7))
    x = []
    for n3 in range(8):
        c = pool.alloc2(); x.append(c)
        k.lg(f"ds_read_b64 {vr(c[0],2)}, v4 offset:{n3*74*8}", ("e2r", n3))
    k.need(lg=("e2r", 7))
    y = dft(k, pool, x, +1)
    k.need(vm=("xg", 7))
    e(f"s_mov_b32 s30, {f32hex(2.0**-22)}")
    e("s_mov_b32 s32, 0xffff0000")
    for c in range(8):
        re_, im_ = y[c]
        e(f"v_mul_f32 v{re_}, s30, v{re_}"); e(f"v_mul_f32 v{im_}, s30, v{im_}")
        e(f"v_cvt_pk_bf16_f32 v10, v{re_}, v{im_}")
        e(f"v_lshlrev_b32 v{re_}, 16, v10"); e(f"v_and_b32 v{im_}, s32, v10")
        e(f"v_lshlrev_b32 v11, 16, v{GR+c}"); e(f"v_and_b32 v12, s32, v{GR+c}")
        e(f"v_mul_f32 v{re_}, v{re_}, v11"); e(f"v_mul_f32 v{im_}, v{im_}, v12")
        e(f"v_cvt_pk_bf16_f32 v10, v{re_}, v{im_}")
        e(f"v_lshlrev_b32 v{re_}, 16, v10"); e(f"v_and_b32 v{im_}, s32, v10")
        e(f"v_lshlrev_b32 v11, 16, v{XR+c}"); e(f"v_and_b32 v12, s32, v{XR+c}")
        e(f"v_add_f32 v{re_}, v11, v{re_}"); e(f"v_add_f32 v{im_}, v12, v{im_}")
        e(f"v_cvt_pk_bf16_f32 v{XR+c}, v{re_}, v{im_}")
        e(f"buffer_store_dword v{XR+c}, v3, s[36:39], s23 offen offset:{256*c}")
    e("s_waitcnt vmcnt(0)")
    k.label("k3_end")
    e("s_endpgm")
    return k.text()

def desc():
    return kernel_desc(NAME, 128, 44)
```

```python
HEADER_COMMON = '.amdgcn_target "amdgcn-amd-amdhsa--gfx950"\n.text\n'
from asmlib import kernel_header
def build(kernels, launch_lines, extra_text="", rodata_extra=""):
    out = []
    for l in launch_lines:
        out.append("; " + l)
    out.append(HEADER_COMMON)
    for name, body, desc in kernels:
        out.append(kernel_header(name) + body)
    out.append(extra_text)
    out.append('.section .rodata,"a"\n.p2align 6\n')
    for name, body, desc in kernels:
        out.append(".p2align 6\n" + desc)
    out.append(rodata_extra)
    return "\n".join(out)
```

```python
import sys
import k1, k2, k3, gemm1, gemm2, mkfile, fftlib
def build(order=("k1", "gemm1", "gemm2", "k2", "k3")):
    mods = {"k1": k1, "k2": k2, "k3": k3, "gemm1": gemm1, "gemm2": gemm2}
    geo = {"k1": "grid=(%d,1,1) block=(512,1,1) lds=%d" % (256 + k1.NWT + k1.NPF, k1.LDS_BYTES),
           "k2": "grid=(257,1,1) block=(256,1,1) lds=%d" % k2.LDS_BYTES,
           "k3": "grid=(256,1,1) block=(512,1,1) lds=%d" % k3.LDS_BYTES,
           "gemm1": "grid=(256,1,1) block=(512,1,1) lds=%d" % gemm1.LDS_BYTES,
           "gemm2": "grid=(256,1,1) block=(512,1,1) lds=%d" % gemm2.LDS_BYTES}
    kernels = [(mods[n].NAME, mods[n].gen(), mods[n].desc()) for n in order]
    launches = ["@launch kernel=%s %s" % (mods[n].NAME, geo[n]) for n in order]
    return mkfile.build(kernels, launches, rodata_extra=fftlib.twiddle_table_text())
if __name__ == "__main__":
    s = build()
    out = sys.argv[1] if len(sys.argv) > 1 else "all.s"
    open(out, "w").write(s)
    print(out, len(s), "bytes", len(s.splitlines()), "lines")
```

```python
from asmlib import *
from layout import *

NAME = "gemm2_kernel"
NS = 5
LDS_BYTES = 8 * NS * 4096

def gen(no_mfma=False, no_tr=False, no_epi=False, no_gl=False, no_b=False, no_w=False, xmap='rr'):
    k = K("g2")
    e = k.e
    ACC = 128
    def acc(j, nt): return ACC + 16 * (2*j + nt)
    ASET = [64, 80]
    BR = 24
    vA = 8
    vW = 12
    e("s_cmp_ge_u32 s2, 256")
    e("s_cbranch_scc1 g2_end")
    e("s_load_dwordx2 s[4:5], s[0:1], 48")
    e("s_load_dwordx2 s[8:9], s[0:1], 72")
    if xmap == 'rr':
        e("s_and_b32 s23, s2, 7")
        e("s_lshr_b32 s31, s2, 3")
    else:
        e("s_lshr_b32 s23, s2, 5")
        e("s_and_b32 s31, s2, 31")
    e("s_and_b32 s20, s23, 1")
    e("s_lshl_b32 s20, s20, 2")
    e("s_and_b32 s32, s31, 3")
    e("s_add_u32 s20, s20, s32")
    e("s_lshr_b32 s21, s23, 1")
    e("s_lshl_b32 s21, s21, 3")
    e("s_lshr_b32 s32, s31, 2")
    e("s_add_u32 s21, s21, s32")
    e("v_lshrrev_b32 v10, 6, v0")
    e("v_and_b32 v1, 63, v0")
    e("s_nop 0")
    e("v_readfirstlane_b32 s22, v10")
    e("s_waitcnt lgkmcnt(0)")
    e("s_mov_b32 s12, s4")
    e("s_mov_b32 s13, s5")
    e("s_mov_b32 s14, %d" % (3584 * 2048))
    e("s_mov_b32 s15, 0x00020000")
    e("s_mov_b32 s16, s8")
    e("s_mov_b32 s17, s9")
    e("s_mov_b32 s18, %d" % WS_BYTES)
    e("s_mov_b32 s19, 0x00020000")
    e("v_lshrrev_b32 v2, 4, v1")
    e("v_lshlrev_b32 v3, 2, v2")
    e("v_and_b32 v4, 15, v1")
    e("v_xor_b32 v4, v3, v4")
    e("v_lshlrev_b32 v4, 4, v4")
    e("v_lshlrev_b32 v2, 11, v2")
    e("s_lshl_b32 s23, s20, 8")
    e(f"v_add3_u32 v{vW}, v2, v4, s23")
    for j in range(1, 4):
        e(f"v_add_u32 v{vW+j}, {8192*j}, v{vW}")
    e("v_bfe_u32 v2, v1, 2, 2")
    e("v_bfe_u32 v3, v1, 4, 1")
    e("v_lshlrev_b32 v3, 1, v3")
    e("v_bfe_u32 v4, v1, 1, 1")
    e("v_add_u32 v3, v3, v4")
    e("v_and_b32 v4, 1, v1")
    e("v_lshlrev_b32 v4, 3, v4")
    e("v_lshrrev_b32 v5, 5, v1")
    e("v_lshlrev_b32 v5, 11, v5")
    e(f"s_mul_i32 s23, s22, {NS*4096}")
    e("v_add3_u32 v4, v4, v5, s23")
    e("v_lshlrev_b32 v6, 4, v2")
    e("v_add_u32 v6, v6, v3")
    for j in range(4):
        e(f"v_xor_b32 v7, {j}, v2")
        e("v_lshlrev_b32 v7, 2, v7")
        e("v_add_u32 v7, v7, v6")
        e("v_lshlrev_b32 v7, 4, v7")
        e(f"v_add_u32 v{vA+j}, v7, v4")
    e("v_lshlrev_b32 v6, 4, v1")
    e("s_mul_i32 s24, s22, %d" % (448 * 2048))
    e("s_lshl_b32 s25, s21, 1")
    e("s_mul_i32 s25, s25, 229376")
    e("s_mul_i32 s23, s22, %d" % (28 * 1024))
    e("s_add_u32 s25, s25, s23")
    e(f"s_add_u32 s25, s25, {H_OFF}")
    e("s_add_u32 s26, s25, 229376")
    e(f"s_mul_i32 s27, s22, {NS*4096}")
    e("s_mov_b32 s28, 0")

    def loads(slot, tag):
        for nt in range(2):
            if no_b: k.vmq.append(("b", tag))
            else: k.vm(f"buffer_load_dwordx4 {vr(BR+8*slot+4*nt,4)}, v6, s[16:19], s{25+nt} offen", ("b", tag))
        for j in range(4):
            e(f"s_add_u32 m0, s27, {4096*slot + 1024*j}")
            e("s_nop 0")
            if no_w: k.vmq.append(("w", tag))
            else: k.vm(f"buffer_load_dwordx4 v{vW+j}, s[12:15], s24 offen lds", ("w", tag))
        e(f"s_add_u32 s24, s24, {16*2048}")
        e("s_add_u32 s25, s25, 1024")
        e("s_add_u32 s26, s26, 1024")
    def trreads(aset, slot, tag):
        for j in range(4):
            for hh in range(2):
                if no_tr: k.lgq.append(("a", tag, j))
                else: k.lg(f"ds_read_b64_tr_b16 {vr(aset+4*j+2*hh,2)}, v{vA+j} offset:{4096*slot + 1024*hh}", ("a", tag, j))
    for i in range(NS - 1):
        loads(i, i)
    for i in range(128):
        e(f"v_mov_b32 v{ACC+i}, 0")
    k.need(vm=("w", 0))
    trreads(ASET[0], 0, 0)
    e("s_mov_b32 s30, 2")
    start_vm = list(k.vmq); start_lg = list(k.lgq)
    def step(s, issue=True):
        Acur = ASET[s % 2]; Anext = ASET[(s+1) % 2]
        if issue:
            loads((s+NS-1) % NS, s+NS-1)
        k.need(vm=[("w", s+1)])
        trreads(Anext, (s+1) % NS, s+1)
        k.need(vm=[("b", s)])
        for j in range(4):
            k.need(lg=("a", s, j))
            for nt in range(2):
                if not no_mfma: e(f"v_mfma_f32_32x32x16_bf16 {vr(acc(j,nt),16)}, {vr(Acur+4*j,4)}, {vr(BR+8*(s%NS)+4*nt,4)}, {vr(acc(j,nt),16)}")
    k.label("g2_loop")
    for s in range(10):
        step(s)
    def sh(t):
        if t[0] in ("w", "b"): return (t[0], t[1]-10)
        return ("a", t[1]-10, t[2])
    k.vmq = [sh(t) for t in k.vmq]; k.lgq = [sh(t) for t in k.lgq]
    assert k.vmq == start_vm and k.lgq == start_lg, (k.vmq, start_vm, k.lgq, start_lg)
    e("s_sub_u32 s30, s30, 1")
    e("s_cmp_lg_u32 s30, 0")
    e("s_cbranch_scc1 g2_loop")
    for s in range(8):
        step(s, issue=(s < 4))
    if no_epi:
        k.drain(); k.label("g2_end"); e("s_endpgm"); return k.text()
    k.drain()
    k.nop(16)
    e("s_barrier")
    e("v_lshlrev_b32 v2, 4, v1")
    e("s_lshl_b32 s23, s22, 12")
    e("v_add_u32 v2, s23, v2")
    e("v_lshlrev_b32 v3, 4, v1")
    e("s_and_b32 s23, s22, 3")
    e("s_lshl_b32 s23, s23, 15")
    e("v_add_u32 v3, s23, v3")
    e("v_add_u32 v5, 0x10000, v2")
    for rnd in range(2):
        for T4 in range(4):
            T = 4*rnd + T4
            for q in range(4):
                e(f"ds_write_b128 v{2 if T4 < 2 else 5}, {vr(ACC+16*T+4*q,4)} offset:{32768*(T4%2) + 1024*q}")
        e("s_waitcnt lgkmcnt(0)")
        e("s_barrier")
        lab = k.newlabel("skip")
        e(f"s_cmp_lt_u32 s22, 4")
        e(f"s_cbranch_scc{1 if rnd == 1 else 0} {lab}")
        for src in range(8):
            dst = 64 if src == 0 else 80 + 16*((src-1) % 3)
            for q in range(4):
                e(f"ds_read_b128 {vr(dst+4*q,4)}, v3 offset:{4096*src + 1024*q}")
            if src >= 1:
                e("s_waitcnt lgkmcnt(0)")
                for i in range(16):
                    e(f"v_add_f32 v{64+i}, v{64+i}, v{dst+i}")
        e("s_waitcnt lgkmcnt(0)")
        k.label(lab)
        if rnd == 0:
            e("s_barrier")
    e("s_lshr_b32 s23, s22, 1")
    e("s_and_b32 s31, s22, 1")
    e("s_lshl_b32 s23, s23, 5")
    e("s_lshl_b32 s32, s20, 7")
    e("s_add_u32 s23, s23, s32")
    e("s_lshl_b32 s31, s31, 5")
    e("s_lshl_b32 s32, s21, 6")
    e("s_add_u32 s31, s31, s32")
    e("s_lshl_b32 s31, s31, 11")
    e("s_lshl_b32 s23, s23, 1")
    e("s_add_u32 s31, s31, s23")
    e(f"s_add_u32 s31, s31, {G_OFF}")
    e("v_and_b32 v2, 31, v1")
    e("v_lshlrev_b32 v2, 11, v2")
    e("v_lshrrev_b32 v3, 5, v1")
    e("v_lshlrev_b32 v3, 3, v3")
    e("v_add_u32 v2, v2, v3")
    e(f"s_mov_b32 s33, {f32hex(-1.4426950408889634)}")
    e("s_mov_b32 s34, 0xffff0000")
    for a in range(4):
        r0 = 64 + 4*a
        for p in range(2):
            e(f"v_cvt_pk_bf16_f32 v{80+p}, v{r0+2*p}, v{r0+2*p+1}")
        for p in range(2):
            e(f"v_lshlrev_b32 v{82+2*p}, 16, v{80+p}")
            e(f"v_and_b32 v{83+2*p}, s34, v{80+p}")
        for i in range(4):
            e(f"v_mul_f32 v{86+i}, s33, v{82+i}")
        for i in range(4):
            e(f"v_exp_f32 v{86+i}, v{86+i}")
        for i in range(4):
            e(f"v_add_f32 v{86+i}, 1.0, v{86+i}")
        for i in range(4):
            e(f"v_rcp_f32 v{86+i}, v{86+i}")
        for i in range(4):
            e(f"v_mul_f32 v{86+i}, v{82+i}, v{86+i}")
        for p in range(2):
            e(f"v_cvt_pk_bf16_f32 v{90+p}, v{86+2*p}, v{87+2*p}")
        e(f"buffer_store_dwordx2 v[90:91], v2, s[16:19], s31 offen offset:{16*a}")
    e("s_waitcnt vmcnt(0)")
    k.label("g2_end")
    e("s_endpgm")
    return k.text()

def desc():
    return kernel_desc(NAME, 256, 40)
```

```python
from asmlib import *
from layout import *
from fftlib import *

NAME = "k1_kernel"
NWT = 288
NPF = 84
EX_BYTES = 5120
T_OFF = 8 * EX_BYTES
LDS_BYTES = T_OFF + 8 * 516 * 8

def wave_sum(k, v):
    e = k.e
    for mod in ["row_shr:1", "row_shr:2", "row_shr:4", "row_shr:8"]:
        e("s_nop 1")
        e(f"v_add_f32_dpp v{v}, v{v}, v{v} {mod} row_mask:0xf bank_mask:0xf")
    e("s_nop 1")
    e(f"v_add_f32_dpp v{v}, v{v}, v{v} row_bcast:15 row_mask:0xa bank_mask:0xf")
    e("s_nop 1")
    e(f"v_add_f32_dpp v{v}, v{v}, v{v} row_bcast:31 row_mask:0xc bank_mask:0xf")
    e("s_nop 1")

def tw_srd(k, s):
    e = k.e
    e(f"s_getpc_b64 s[{s}:{s+1}]")
    e(f"s_add_u32 s{s}, s{s}, twtab@rel32@lo+4")
    e(f"s_addc_u32 s{s+1}, s{s+1}, twtab@rel32@hi+12")
    e(f"s_mov_b32 s{s+2}, 16384")
    e(f"s_mov_b32 s{s+3}, 0x00020000")

def gen():
    k = K("k1")
    e = k.e
    e(f"s_cmp_ge_u32 s2, {256+NWT+NPF}")
    e("s_cbranch_scc1 k1_end")
    e(f"s_cmp_lt_u32 s2, {NPF}")
    e("s_cbranch_scc1 k1_pf")
    e(f"s_sub_u32 s2, s2, {NPF}")
    e("s_load_dwordx2 s[4:5], s[0:1], 0")
    e("s_load_dwordx4 s[8:11], s[0:1], 8")
    e("s_load_dwordx2 s[6:7], s[0:1], 72")
    e("v_and_b32 v1, 63, v0")
    e("v_lshrrev_b32 v2, 6, v0")
    e("s_nop 0")
    e("v_readfirstlane_b32 s22, v2")
    e("s_waitcnt lgkmcnt(0)")
    e("s_mov_b32 s16, s6"); e("s_mov_b32 s17, s7"); e(f"s_mov_b32 s18, {WS_BYTES}"); e("s_mov_b32 s19, 0x00020000")
    e("s_cmp_ge_u32 s2, 256")
    e("s_cbranch_scc1 k1_wt")
    e("s_mov_b32 s12, s4"); e("s_mov_b32 s13, s5"); e(f"s_mov_b32 s14, {2048*2048}"); e("s_mov_b32 s15, 0x00020000")
    tw_srd(k, 24)
    e("s_and_b32 s20, s2, 7")
    e("s_lshl_b32 s20, s20, 5")
    e("s_lshr_b32 s21, s2, 3")
    e("s_add_u32 s20, s20, s21")
    e("s_lshl_b32 s20, s20, 3")
    e("s_add_u32 s21, s20, s22")
    e("s_lshl_b32 s23, s21, 11")
    e("v_lshlrev_b32 v3, 2, v1")
    RAW = 16
    for n1 in range(8):
        k.vm(f"buffer_load_dword v{RAW+n1}, v3, s[12:15], s23 offen offset:{256*n1}", ("x", n1))
    TW1 = 96; TW2 = 112
    for a in range(1, 8):
        e(f"v_mul_u32_u24 v4, {4*a}, v1")
        e("v_and_b32 v4, 2047, v4")
        e("v_lshlrev_b32 v4, 3, v4")
        k.vm(f"buffer_load_dwordx2 {vr(TW1+2*(a-1),2)}, v4, s[24:27], 0 offen", ("tw1", a))
    e("v_and_b32 v5, 7, v1")
    for b in range(1, 8):
        e(f"v_mul_u32_u24 v4, {32*b}, v5")
        e("v_and_b32 v4, 2047, v4")
        e("v_lshlrev_b32 v4, 3, v4")
        k.vm(f"buffer_load_dwordx2 {vr(TW2+2*(b-1),2)}, v4, s[24:27], 0 offen", ("tw2", b))
    Z0 = 32
    pool = Pool(48, 96)
    k.need(vm=("x", 7))
    e("s_mov_b32 s30, 0xffff0000")
    for n1 in range(8):
        e(f"v_lshlrev_b32 v{Z0+2*n1}, 16, v{RAW+n1}")
        e(f"v_and_b32 v{Z0+2*n1+1}, s30, v{RAW+n1}")
    e(f"v_add_f32 v6, v{Z0}, v{Z0+1}")
    e(f"v_add_f32 v7, v{Z0+2}, v{Z0+3}")
    for i in range(4, 16, 2):
        e(f"v_add_f32 v6, v6, v{Z0+i}")
        e(f"v_add_f32 v7, v7, v{Z0+i+1}")
    e("v_add_f32 v6, v6, v7")
    wave_sum(k, 6)
    e("v_readlane_b32 s31, v6, 63")
    e(f"s_mov_b32 s32, {f32hex(1.0/1024)}")
    e("v_mov_b32 v8, s32")
    e("v_mul_f32 v8, s31, v8")
    e(f"v_sub_f32 v9, v{Z0}, v8"); e("v_mul_f32 v6, v9, v9")
    e(f"v_sub_f32 v9, v{Z0+1}, v8"); e("v_mul_f32 v7, v9, v9")
    for i in range(2, 16, 2):
        e(f"v_sub_f32 v9, v{Z0+i}, v8"); e("v_fmac_f32 v6, v9, v9")
        e(f"v_sub_f32 v10, v{Z0+i+1}, v8"); e("v_fmac_f32 v7, v10, v10")
    e("v_add_f32 v6, v6, v7")
    wave_sum(k, 6)
    e("v_readlane_b32 s31, v6, 63")
    e("v_mov_b32 v9, s32")
    e("v_mul_f32 v9, s31, v9")
    e("v_cvt_pk_bf16_f32 v8, v8, v8"); e("v_lshlrev_b32 v8, 16, v8")
    e("v_cvt_pk_bf16_f32 v9, v9, v9"); e("v_lshlrev_b32 v9, 16, v9")
    e(f"v_add_f32 v9, {f32hex(1e-5)}, v9")
    e("v_cvt_pk_bf16_f32 v9, v9, v9"); e("v_lshlrev_b32 v9, 16, v9")
    e("v_sqrt_f32 v10, v9")
    e("s_nop 0")
    e("v_rcp_f32 v11, v10")
    e("v_fma_f32 v12, -v10, v10, v9")
    e("v_mul_f32 v11, 0.5, v11")
    e("v_fma_f32 v10, v12, v11, v10")
    e("v_cvt_pk_bf16_f32 v10, v10, v10"); e("v_lshlrev_b32 v10, 16, v10")
    e("v_rcp_f32 v11, v10")
    e("s_nop 0")
    e("v_fma_f32 v12, -v10, v11, 1.0")
    e("v_fma_f32 v11, v12, v11, v11")
    XP = 16
    for n1 in range(8):
        a, b = Z0 + 2*n1, Z0 + 2*n1 + 1
        e(f"v_sub_f32 v{a}, v{a}, v8")
        e(f"v_sub_f32 v{b}, v{b}, v8")
        e(f"v_cvt_pk_bf16_f32 v13, v{a}, v{b}")
        e(f"v_lshlrev_b32 v{a}, 16, v13")
        e(f"v_and_b32 v{b}, s30, v13")
        e(f"v_mul_f32 v13, v{a}, v11")
        e(f"v_mul_f32 v14, v{b}, v11")
        e(f"v_fma_f32 v15, -v13, v10, v{a}")
        e(f"v_fma_f32 v12, -v14, v10, v{b}")
        e(f"v_fma_f32 v13, v15, v11, v13")
        e(f"v_fma_f32 v14, v12, v11, v14")
        e(f"v_cvt_pk_bf16_f32 v{XP+n1}, v13, v14")
        e(f"v_lshlrev_b32 v{a}, 16, v{XP+n1}")
        e(f"v_and_b32 v{b}, s30, v{XP+n1}")
    e("v_lshrrev_b32 v4, 2, v1"); e("v_lshlrev_b32 v4, 9, v4")
    e("v_and_b32 v5, 3, v1"); e("v_lshlrev_b32 v5, 2, v5")
    e("v_add_u32 v4, v4, v5")
    e("s_lshr_b32 s31, s21, 5"); e("s_lshl_b32 s31, s31, 16")
    e("s_and_b32 s32, s21, 31"); e("s_lshl_b32 s32, s32, 4")
    e("s_add_u32 s31, s31, s32")
    if XN_OFF: e(f"s_add_u32 s31, s31, {XN_OFF}")
    for n1 in range(8):
        k.vm(f"buffer_store_dword v{XP+n1}, v4, s[16:19], s31 offen", ("xs", n1))
        if n1 < 7: e("s_add_u32 s31, s31, 8192")
    z = [[Z0+2*n1, Z0+2*n1+1] for n1 in range(8)]
    y = dft(k, pool, z, -1)
    k.need(vm=("tw1", 7))
    for a in range(1, 8):
        y[a] = cmul_reg(k, pool, y[a], [TW1+2*(a-1), TW1+2*(a-1)+1])
    e(f"s_mul_i32 s33, s22, {EX_BYTES}")
    e("v_lshlrev_b32 v4, 3, v1")
    e("v_add_u32 v4, s33, v4")
    for a in range(8):
        k.lg(f"ds_write_b64 v4, {vr(y[a][0],2)} offset:{a*72*8}", ("e1w", a))
        pool.release2(y[a])
    e("v_lshrrev_b32 v5, 3, v1"); e("v_mul_u32_u24 v5, 72, v5")
    e("v_and_b32 v6, 7, v1"); e("v_add_u32 v5, v5, v6")
    e("v_lshlrev_b32 v5, 3, v5"); e("v_add_u32 v5, s33, v5")
    k.need(lg=("e1w", 7))
    x2 = []
    for n2 in range(8):
        c = pool.alloc2(); x2.append(c)
        k.lg(f"ds_read_b64 {vr(c[0],2)}, v5 offset:{n2*64}", ("e1r", n2))
    k.need(lg=("e1r", 7))
    y = dft(k, pool, x2, -1)
    k.need(vm=("tw2", 7))
    for b in range(1, 8):
        y[b] = cmul_reg(k, pool, y[b], [TW2+2*(b-1), TW2+2*(b-1)+1])
    e("v_and_b32 v6, 7, v1"); e("v_mul_u32_u24 v6, 74, v6")
    e("v_lshrrev_b32 v7, 3, v1"); e("v_add_u32 v6, v6, v7")
    e("v_lshlrev_b32 v6, 3, v6"); e("v_add_u32 v6, s33, v6")
    for b in range(8):
        k.lg(f"ds_write_b64 v6, {vr(y[b][0],2)} offset:{b*64}", ("e2w", b))
        pool.release2(y[b])
    k.need(lg=("e2w", 7))
    x3 = []
    for n3 in range(8):
        c = pool.alloc2(); x3.append(c)
        k.lg(f"ds_read_b64 {vr(c[0],2)}, v4 offset:{n3*74*8}", ("e2r", n3))
    k.need(lg=("e2r", 7))
    y = dft(k, pool, x3, -1)
    e(f"s_mul_i32 s34, s22, {516*8}")
    e(f"s_add_u32 s34, s34, {T_OFF}")
    e("v_lshlrev_b32 v7, 3, v1"); e("v_add_u32 v7, s34, v7")
    for c in range(8):
        k.lg(f"ds_write_b64 v7, {vr(y[c][0],2)} offset:{c*512}", ("tw", c))
    k.need(lg=("tw", 7))
    e("s_barrier")
    e("v_lshrrev_b32 v4, 2, v0")
    e("v_and_b32 v5, 3, v0")
    e(f"v_mul_u32_u24 v6, {2*516*8}, v5")
    e("v_lshlrev_b32 v7, 3, v4")
    e(f"v_add3_u32 v6, v6, v7, {T_OFF}") if False else None
    e("v_add_u32 v6, v6, v7")
    e(f"v_add_u32 v6, {T_OFF}, v6")
    for it in range(4):
        k.lg(f"ds_read_b64 {vr(48+4*it,2)}, v6 offset:{it*1024}", ("tr", it))
        k.lg(f"ds_read_b64 {vr(50+4*it,2)}, v6 offset:{it*1024 + 516*8}", ("tr", it))
    e("v_lshlrev_b32 v4, 14, v4")
    e("v_lshlrev_b32 v5, 4, v5")
    e("v_add_u32 v4, v4, v5")
    e("s_lshl_b32 s35, s20, 3")
    e(f"s_add_u32 s35, s35, {ZT_OFF}")
    for it in range(4):
        k.need(lg=("tr", it))
        k.vm(f"buffer_store_dwordx4 {vr(48+4*it,4)}, v4, s[16:19], s35 offen", ("zs", it))
        if it < 3: e(f"s_add_u32 s35, s35, {128*16384}")
    e("s_waitcnt vmcnt(0)")
    e("s_endpgm")
    k.vmq = []; k.lgq = []
    k.label("k1_wt")
    e("s_sub_u32 s20, s2, 256")
    e("s_mul_i32 s21, s20, 7282"); e("s_lshr_b32 s21, s21, 16")
    e("s_mul_i32 s23, s21, 9"); e("s_sub_u32 s20, s20, s23")
    e("s_mov_b32 s12, s8"); e("s_mov_b32 s13, s9"); e(f"s_mov_b32 s14, {2048*1026}"); e("s_mov_b32 s15, 0x00020000")
    e("s_mov_b32 s24, s10"); e("s_mov_b32 s25, s11"); e(f"s_mov_b32 s26, {2048*1026}"); e("s_mov_b32 s27, 0x00020000")
    e("v_and_b32 v2, 63, v0")
    e("v_lshrrev_b32 v3, 6, v0")
    e("v_mul_u32_u24 v4, 1026, v3")
    e("v_lshlrev_b32 v5, 1, v2")
    e("v_add_u32 v4, v4, v5")
    e("s_mul_i32 s30, s21, %d" % (64*1026))
    e("s_lshl_b32 s31, s20, 7")
    e("s_add_u32 s30, s30, s31")
    for it in range(8):
        k.vm(f"buffer_load_ushort v{16+it}, v4, s[12:15], s30 offen", ("wr", it))
        k.vm(f"buffer_load_ushort v{24+it}, v4, s[24:27], s30 offen", ("wi", it))
        if it < 7: e(f"s_add_u32 s30, s30, {8*1026}")
    e("v_mul_u32_u24 v6, 260, v3")
    e("v_lshlrev_b32 v7, 2, v2")
    e("v_add_u32 v6, v6, v7")
    for it in range(8):
        k.need(vm=("wi", it))
        e(f"v_lshlrev_b32 v{24+it}, 16, v{24+it}")
        e(f"v_or_b32 v{16+it}, v{16+it}, v{24+it}")
        k.lg(f"ds_write_b32 v6, v{16+it} offset:{it*8*260}", ("lw", it))
    k.need(lg=("lw", 7))
    e("s_barrier")
    e("v_mul_u32_u24 v6, 260, v2")
    e("v_lshlrev_b32 v7, 2, v3")
    e("v_add_u32 v6, v6, v7")
    for it in range(8):
        k.lg(f"ds_read_b32 v{16+it}, v6 offset:{it*32}", ("lr", it))
    e("v_lshlrev_b32 v4, 13, v3")
    e("v_lshlrev_b32 v5, 2, v2")
    e("v_add_u32 v4, v4, v5")
    e("s_lshl_b32 s30, s20, 19")
    e("s_lshl_b32 s31, s21, 8")
    e("s_add_u32 s30, s30, s31")
    e(f"s_add_u32 s30, s30, {WT_OFF}")
    e("s_lshl_b32 s31, s20, 6")
    for it in range(8):
        k.need(lg=("lr", it))
        e(f"v_add_u32 v8, {8*it}, v3")
        e("v_add_u32 v8, s31, v8")
        e("v_cmp_ge_u32 vcc, 512, v8")
        e("s_and_saveexec_b64 s[32:33], vcc")
        k.vm(f"buffer_store_dword v{16+it}, v4, s[16:19], s30 offen", ("ws", it))
        e("s_mov_b64 exec, s[32:33]")
        if it < 7: e(f"s_add_u32 s30, s30, {8*8192}")
    e("s_waitcnt vmcnt(0)")
    e("s_endpgm")
    k.label("k1_pf")
    e("s_mov_b32 s20, s2")
    e("s_mul_i32 s21, s20, 2341"); e("s_lshr_b32 s21, s21, 16")
    e("s_mul_i32 s23, s21, 28"); e("s_sub_u32 s20, s20, s23")
    e("s_lshl_b32 s23, s21, 3"); e("s_add_u32 s23, s23, 32")
    e("s_load_dwordx2 s[12:13], s[0:1], s23")
    e("s_waitcnt lgkmcnt(0)")
    e(f"s_mov_b32 s14, {3584*2048}"); e("s_mov_b32 s15, 0x00020000")
    e(f"s_mul_i32 s24, s20, {3584*2048//28}")
    e("v_lshlrev_b32 v2, 4, v0")
    for it in range(32):
        e(f"buffer_load_dwordx4 {vr(16+4*(it%8),4)}, v2, s[12:15], s24 offen")
        e("s_add_u32 s24, s24, 8192")
    e("s_waitcnt vmcnt(0)")
    k.label("k1_end")
    e("s_endpgm")
    return k.text()

def desc():
    return kernel_desc(NAME, 128, 40)
```

```python
import math
from asmlib import f32hex

def P2(c):
    return f"v[{c[0]}:{c[1]}]"

class Pool:
    def __init__(self, lo, hi):
        assert lo % 2 == 0
        self.free = list(range(lo, hi - 1, 2))
    def alloc2(self):
        r = self.free.pop(0)
        return [r, r + 1]
    def release2(self, c):
        assert c[1] == c[0] + 1 and c[0] % 2 == 0
        self.free.append(c[0])

def bfly(k, pool, a, b):
    n = pool.alloc2()
    k.e(f"v_pk_add_f32 {P2(n)}, {P2(a)}, {P2(b)}")
    k.e(f"v_pk_add_f32 {P2(b)}, {P2(a)}, {P2(b)} neg_lo:[0,1] neg_hi:[0,1]")
    pool.release2(a)
    return n, b

def bfly_tw(k, pool, a, b, num, den, sign):
    num = num % den
    if num == 0:
        return bfly(k, pool, a, b)
    n = pool.alloc2()
    k.e(f"v_pk_add_f32 {P2(n)}, {P2(a)}, {P2(b)}")
    ang = sign * 2 * math.pi * num / den
    if 4 * num == den:
        t = pool.alloc2()
        if sign < 0:
            k.e(f"v_sub_f32 v{t[0]}, v{a[1]}, v{b[1]}")
            k.e(f"v_sub_f32 v{t[1]}, v{b[0]}, v{a[0]}")
        else:
            k.e(f"v_sub_f32 v{t[0]}, v{b[1]}, v{a[1]}")
            k.e(f"v_sub_f32 v{t[1]}, v{a[0]}, v{b[0]}")
        pool.release2(a); pool.release2(b)
        return n, t
    k.e(f"v_pk_add_f32 {P2(b)}, {P2(a)}, {P2(b)} neg_lo:[0,1] neg_hi:[0,1]")
    pool.release2(a)
    c = math.cos(ang); s = math.sin(ang)
    t = pool.alloc2()
    if (8 * num) % den == 0:
        r = abs(c)
        sc = 1 if c > 0 else -1; ss = 1 if s > 0 else -1
        def comb(dst, p, q, sp, sq):
            if sp > 0 and sq > 0: k.e(f"v_add_f32 v{dst}, v{p}, v{q}")
            elif sp > 0 and sq < 0: k.e(f"v_sub_f32 v{dst}, v{p}, v{q}")
            elif sp < 0 and sq > 0: k.e(f"v_sub_f32 v{dst}, v{q}, v{p}")
            else:
                k.e(f"v_add_f32 v{dst}, v{p}, v{q}")
                return -1
            return 1
        f0 = comb(t[0], b[0], b[1], sc, -ss)
        f1 = comb(t[1], b[0], b[1], ss, sc)
        k.e(f"v_mul_f32 v{t[0]}, {f32hex(f0*r)}, v{t[0]}")
        k.e(f"v_mul_f32 v{t[1]}, {f32hex(f1*r)}, v{t[1]}")
        pool.release2(b)
        return n, t
    k.e(f"v_mul_f32 v{t[0]}, {f32hex(c)}, v{b[0]}")
    k.e(f"v_mul_f32 v{t[1]}, {f32hex(s)}, v{b[0]}")
    k.e(f"v_fmac_f32 v{t[0]}, {f32hex(-s)}, v{b[1]}")
    k.e(f"v_fmac_f32 v{t[1]}, {f32hex(c)}, v{b[1]}")
    pool.release2(b)
    return n, t

def dft(k, pool, x, sign):
    N = len(x)
    if N == 1:
        return x
    h = N // 2
    ev = []; od = []
    for n in range(h):
        a, b = bfly_tw(k, pool, x[n], x[n + h], n, N, sign)
        ev.append(a); od.append(b)
    ye = dft(k, pool, ev, sign)
    yo = dft(k, pool, od, sign)
    y = [None] * N
    for i in range(h):
        y[2*i] = ye[i]; y[2*i+1] = yo[i]
    return y

def cmul_reg(k, pool, x, tw, conj=False):
    t, u = pool.alloc2()
    assert tw[1] == tw[0] + 1 and tw[0] % 2 == 0
    k.e(f"v_pk_mul_f32 {P2([t,u])}, {P2(x)}, {P2(tw)} op_sel:[0,0] op_sel_hi:[1,0]")
    if not conj:
        k.e(f"v_pk_fma_f32 {P2([t,u])}, {P2(x)}, {P2(tw)}, {P2([t,u])} op_sel:[1,1,0] op_sel_hi:[0,1,1] neg_lo:[1,0,0]")
    else:
        k.e(f"v_pk_fma_f32 {P2([t,u])}, {P2(x)}, {P2(tw)}, {P2([t,u])} op_sel:[1,1,0] op_sel_hi:[0,1,1] neg_hi:[1,0,0]")
    pool.release2(x)
    return [t, u]

def twiddle_table_text(label="twtab"):
    import struct
    lines = [".p2align 8", f".type {label},@object", f".size {label}, 16384", f"{label}:"]
    for j in range(2048):
        a = -2 * math.pi * j / 2048
        c = struct.unpack("<I", struct.pack("<f", math.cos(a)))[0]
        s = struct.unpack("<I", struct.pack("<f", math.sin(a)))[0]
        lines.append(f".long 0x{c:08x}, 0x{s:08x}")
    return "\n".join(lines) + "\n"

if __name__ == "__main__":
    import re, numpy as np, struct
    class KK:
        def __init__(s): s.lines = []
        def e(s, t): s.lines.append(t)
    def run(lines, regs):
        def val(tok):
            neg = tok.startswith("-")
            if neg: tok = tok[1:]
            if tok.startswith("v"): v = regs[int(tok[1:])]
            elif tok.startswith("0x"): v = np.float32(struct.unpack("<f", struct.pack("<I", int(tok, 16)))[0])
            else: v = np.float32(float(tok))
            return -v if neg else v
        for l in lines:
            op, rest = l.split(None, 1)
            ops = [o.strip() for o in rest.split(",")]
            d = int(ops[0][1:])
            if op == "v_add_f32": regs[d] = val(ops[1]) + val(ops[2])
            elif op == "v_sub_f32": regs[d] = val(ops[1]) - val(ops[2])
            elif op == "v_mul_f32": regs[d] = val(ops[1]) * val(ops[2])
            elif op == "v_fmac_f32": regs[d] = regs[d] + val(ops[1]) * val(ops[2])
            elif op == "v_fma_f32": regs[d] = val(ops[1]) * val(ops[2]) + val(ops[3])
            else: raise Exception(op)
    for N in (2, 4, 8, 16):
        for sign in (-1, 1):
            kk = KK(); pool = Pool(2*N, 2*N + 40)
            x = [[2*i, 2*i+1] for i in range(N)]
            regs = {}
            rng = np.random.default_rng(N)
            xv = rng.standard_normal(N) + 1j * rng.standard_normal(N)
            for i in range(N):
                regs[2*i] = np.float32(xv[i].real); regs[2*i+1] = np.float32(xv[i].imag)
            y = dft(kk, pool, x, sign)
            run(kk.lines, regs)
            got = np.array([regs[a] + 1j * regs[b] for a, b in y])
            exp = np.fft.fft(xv) if sign < 0 else np.fft.ifft(xv) * N
            print(N, sign, "instrs", len(kk.lines), "err", np.abs(got - exp).max())
```

```python
from asmlib import *
from layout import *
from fftlib import *
from k1 import tw_srd

NAME = "k2_kernel"
SELREG = 17408
REG2 = 2 * SELREG
LDS_BYTES = 2 * REG2

def gen():
    k = K("k2")
    e = k.e
    e("s_cmp_ge_u32 s2, 257")
    e("s_cbranch_scc1 k2_end")
    e("s_load_dwordx2 s[6:7], s[0:1], 72")
    e("v_lshrrev_b32 v2, 6, v0")
    e("s_nop 0")
    e("v_readfirstlane_b32 s22, v2")
    tw_srd(k, 24)
    e("s_waitcnt lgkmcnt(0)")
    e("s_mov_b32 s16, s6"); e("s_mov_b32 s17, s7"); e(f"s_mov_b32 s18, {WS_BYTES}"); e("s_mov_b32 s19, 0x00020000")
    e("s_sub_u32 s20, 512, s2")
    e("s_and_b32 s21, s20, 511")
    e("s_lshr_b32 s23, s22, 1")
    e("s_cmp_eq_u32 s23, 0")
    e("s_cselect_b32 s28, s2, s21")
    e("s_lshl_b32 s28, s28, 14")
    e(f"s_add_u32 s28, s28, {ZT_OFF}")
    e("v_and_b32 v3, 127, v0")
    e("v_lshlrev_b32 v4, 3, v3")
    TW1F, TW2F, TW1I, TW2I = 16, 46, 76, 90
    WREG = 120
    pool = Pool(152, 252)
    x = [pool.alloc2() for _ in range(16)]
    for n1 in range(16):
        k.vm(f"buffer_load_dwordx2 {vr(x[n1][0],2)}, v4, s[16:19], s28 offen offset:{1024*(n1%4)}", ("x", n1))
        if n1 % 4 == 3 and n1 < 15: e("s_add_u32 s28, s28, 4096")
    def twload(dst, mulconst, vidx, tag):
        e(f"v_mul_u32_u24 v5, {mulconst}, v{vidx}")
        e("v_and_b32 v5, 2047, v5")
        e("v_lshlrev_b32 v5, 3, v5")
        k.vm(f"buffer_load_dwordx2 {vr(dst,2)}, v5, s[24:27], 0 offen", tag)
    for a in range(1, 16):
        twload(TW1F + 2*(a-1), a, 3, ("tw1f", a))
    e("v_and_b32 v6, 7, v0")
    for b in range(1, 16):
        twload(TW2F + 2*(b-1), 16*b, 6, ("tw2f", b))
    for al in range(1, 8):
        twload(TW1I + 2*(al-1), al, 0, ("tw1i", al))
    e("v_and_b32 v7, 15, v0")
    for be in range(1, 16):
        twload(TW2I + 2*(be-1), 8*be, 7, ("tw2i", be))
    e("v_lshlrev_b32 v8, 2, v0")
    e("s_lshl_b32 s29, s2, 13")
    e(f"s_add_u32 s29, s29, {WT_OFF}")
    e("s_lshl_b32 s30, s20, 13")
    e(f"s_add_u32 s30, s30, {WT_OFF}")
    for c in range(8):
        k.vm(f"buffer_load_dword v{WREG+c}, v8, s[16:19], s29 offen offset:{1024*(c%4)}", ("wa", c))
        if c == 3: e("s_add_u32 s29, s29, 4096")
    for c in range(8):
        e(f"v_sub_u32 v9, {2048-256*c}, v0")
        e("v_and_b32 v9, 2047, v9")
        e("v_lshlrev_b32 v9, 2, v9")
        k.vm(f"buffer_load_dword v{WREG+8+c}, v9, s[16:19], s30 offen", ("wb", c))
    e("s_lshl_b32 s31, s2, 4")
    e("v_mov_b32 v9, s31")
    k.vm("buffer_load_dwordx2 v[10:11], v9, s[24:27], 0 offen", ("wk", 0))
    e("s_cmp_eq_u32 s23, 0")
    e("s_cselect_b32 s31, 1.0, -1.0")
    e("v_mov_b32 v12, s31")
    e(f"s_mul_i32 s32, s23, {SELREG}")
    k.need(vm=("x", 15))
    for n1 in range(16):
        e(f"v_mul_f32 v{x[n1][1]}, v12, v{x[n1][1]}")
    y = dft(k, pool, x, -1)
    k.need(vm=("tw1f", 15))
    for a in range(1, 16):
        y[a] = cmul_reg(k, pool, y[a], [TW1F+2*(a-1), TW1F+2*(a-1)+1])
    e("v_add_u32 v13, s32, v4")
    for a in range(16):
        k.lg(f"ds_write_b64 v13, {vr(y[a][0],2)} offset:{a*136*8}", ("e1w", a)); pool.release2(y[a])
    e("v_lshrrev_b32 v14, 3, v3"); e("v_mul_u32_u24 v14, 136, v14"); e("v_add_u32 v14, v14, v6")
    e("v_lshlrev_b32 v14, 3, v14"); e("v_add_u32 v14, s32, v14")
    k.need(lg=("e1w", 15))
    e("s_barrier")
    x = []
    for n2 in range(16):
        c = pool.alloc2(); x.append(c)
        k.lg(f"ds_read_b64 {vr(c[0],2)}, v14 offset:{n2*64}", ("e1r", n2))
    k.need(lg=("e1r", 15))
    y = dft(k, pool, x, -1)
    k.need(vm=("tw2f", 15))
    for b in range(1, 16):
        y[b] = cmul_reg(k, pool, y[b], [TW2F+2*(b-1), TW2F+2*(b-1)+1])
    e("v_mul_u32_u24 v13, 264, v6"); e("v_lshrrev_b32 v15, 3, v3"); e("v_add_u32 v13, v13, v15")
    e("v_lshlrev_b32 v13, 3, v13"); e("v_add_u32 v13, s32, v13"); e(f"v_add_u32 v13, {REG2}, v13")
    for b in range(16):
        k.lg(f"ds_write_b64 v13, {vr(y[b][0],2)} offset:{b*128}", ("e2w", b)); pool.release2(y[b])
    e("v_lshlrev_b32 v14, 3, v0"); e(f"v_add_u32 v14, {REG2}, v14")
    k.need(lg=("e2w", 15))
    e("s_barrier")
    xp = []; xq = []
    for n3 in range(8):
        c = pool.alloc2(); xp.append(c)
        k.lg(f"ds_read_b64 {vr(c[0],2)}, v14 offset:{n3*264*8}", ("e2r", n3))
        c = pool.alloc2(); xq.append(c)
        k.lg(f"ds_read_b64 {vr(c[0],2)}, v14 offset:{SELREG + n3*264*8}", ("e2r", n3))
    k.need(lg=("e2r", 7))
    P = dft(k, pool, xp, -1)
    Q = dft(k, pool, xq, -1)
    k.need(vm=[("wk", 0)])
    e("v_mov_b32 v252, v11"); e("v_sub_f32 v253, 0, v10")
    e("v_mov_b32 v254, v11"); e("v_mov_b32 v255, v10")
    e("s_mov_b32 s33, 0xffff0000")
    lab_gen = "k2_wgen"
    e("s_cmp_lg_u32 s2, 0")
    e(f"s_cbranch_scc1 {lab_gen}")
    sv_vm = list(k.vmq); sv_lg = list(k.lgq)
    e(f"s_mov_b32 s29, {WT_OFF}")
    for c in range(8):
        e(f"v_sub_u32 v5, {2048-256*c}, v0")
        e("v_and_b32 v5, 2047, v5")
        e("v_lshlrev_b32 v5, 2, v5")
        e(f"buffer_load_dword v{WREG+16+c}, v5, s[16:19], s29 offen")
    e(f"s_mov_b32 s29, {WT_OFF + 512*8192}")
    for c in range(8):
        e(f"buffer_load_dword v{WREG+24+c}, v8, s[16:19], s29 offen offset:{1024*(c%4)}")
        if c == 3: e("s_add_u32 s29, s29, 4096")
    e("s_waitcnt vmcnt(0)")
    k.vmq = []; k.lgq = sv_lg
    WF = TW1F
    for c in range(8):
        e(f"v_lshlrev_b32 v5, 16, v{WREG+c}"); e(f"v_and_b32 v13, s33, v{WREG+c}")
        e(f"v_lshlrev_b32 v14, 16, v{WREG+16+c}"); e(f"v_and_b32 v15, s33, v{WREG+16+c}")
        e("v_add_f32 v5, v5, v14"); e("v_sub_f32 v13, v13, v15")
        e(f"v_mul_f32 v{WF+4*c}, 0.5, v5"); e(f"v_mul_f32 v{WF+4*c+1}, 0.5, v13")
        e(f"v_lshlrev_b32 v5, 16, v{WREG+24+c}"); e(f"v_and_b32 v13, s33, v{WREG+24+c}")
        e(f"v_lshlrev_b32 v14, 16, v{WREG+8+c}"); e(f"v_and_b32 v15, s33, v{WREG+8+c}")
        e("v_add_f32 v5, v5, v14"); e("v_sub_f32 v13, v13, v15")
        e(f"v_mul_f32 v{WF+4*c+2}, 0.5, v5"); e(f"v_mul_f32 v{WF+4*c+3}, 0.5, v13")
    e("s_branch k2_wdone")
    k.label(lab_gen)
    k.vmq = sv_vm
    k.need(vm=[("wa", 7), ("wb", 7)])
    for c in range(8):
        e(f"v_lshlrev_b32 v{WF+4*c}, 16, v{WREG+c}"); e(f"v_and_b32 v{WF+4*c+1}, s33, v{WREG+c}")
        e(f"v_lshlrev_b32 v{WF+4*c+2}, 16, v{WREG+8+c}"); e(f"v_and_b32 v{WF+4*c+3}, s33, v{WREG+8+c}")
        e(f"v_sub_f32 v{WF+4*c+3}, 0, v{WF+4*c+3}")
    k.label("k2_wdone")
    k.vmq = []
    O1 = []; O2 = []
    for c in range(8):
        p, q = P[c], Q[c]
        S_, D_ = bfly(k, pool, p, q)
        T_ = cmul_reg(k, pool, D_, [252, 253])
        U_, V_ = bfly(k, pool, S_, T_)
        A_ = cmul_reg(k, pool, U_, [WF+4*c, WF+4*c+1])
        B_ = cmul_reg(k, pool, V_, [WF+4*c+2, WF+4*c+3])
        G1, G2 = bfly(k, pool, A_, B_)
        G2 = cmul_reg(k, pool, G2, [254, 255])
        o1, o2 = bfly(k, pool, G1, G2)
        O1.append(o1); O2.append(o2)
    y1 = dft(k, pool, O1, +1)
    y2 = dft(k, pool, O2, +1)
    e("s_waitcnt vmcnt(0)")
    for al in range(1, 8):
        y1[al] = cmul_reg(k, pool, y1[al], [TW1I+2*(al-1), TW1I+2*(al-1)+1], conj=True)
        y2[al] = cmul_reg(k, pool, y2[al], [TW1I+2*(al-1), TW1I+2*(al-1)+1], conj=True)
    e("v_lshlrev_b32 v13, 3, v0")
    for al in range(8):
        k.lg(f"ds_write_b64 v13, {vr(y1[al][0],2)} offset:{al*272*8}", ("e3w", al)); pool.release2(y1[al])
        k.lg(f"ds_write_b64 v13, {vr(y2[al][0],2)} offset:{SELREG + al*272*8}", ("e3w", al)); pool.release2(y2[al])
    e("v_lshrrev_b32 v14, 4, v3"); e("v_mul_u32_u24 v14, 272, v14"); e("v_add_u32 v14, v14, v7")
    e("v_lshlrev_b32 v14, 3, v14"); e("v_add_u32 v14, s32, v14")
    k.need(lg=("e3w", 7))
    e("s_barrier")
    x = []
    for k1 in range(16):
        c = pool.alloc2(); x.append(c)
        k.lg(f"ds_read_b64 {vr(c[0],2)}, v14 offset:{k1*128}", ("e3r", k1))
    k.need(lg=("e3r", 15))
    y = dft(k, pool, x, +1)
    for be in range(1, 16):
        y[be] = cmul_reg(k, pool, y[be], [TW2I+2*(be-1), TW2I+2*(be-1)+1], conj=True)
    e("v_mul_u32_u24 v13, 130, v7"); e("v_lshrrev_b32 v15, 4, v3"); e("v_add_u32 v13, v13, v15")
    e("v_lshlrev_b32 v13, 3, v13"); e("v_add_u32 v13, s32, v13"); e(f"v_add_u32 v13, {REG2}, v13")
    for be in range(16):
        k.lg(f"ds_write_b64 v13, {vr(y[be][0],2)} offset:{be*64}", ("e4w", be)); pool.release2(y[be])
    e("v_add_u32 v14, s32, v4"); e(f"v_add_u32 v14, {REG2}, v14")
    k.need(lg=("e4w", 15))
    e("s_barrier")
    x = []
    for k2 in range(16):
        c = pool.alloc2(); x.append(c)
        k.lg(f"ds_read_b64 {vr(c[0],2)}, v14 offset:{k2*130*8}", ("e4r", k2))
    k.need(lg=("e4r", 15))
    y = dft(k, pool, x, +1)
    for g in range(16):
        e(f"v_mul_f32 v{y[g][1]}, v12, v{y[g][1]}")
    e("s_cmp_eq_u32 s23, 0")
    e("s_cbranch_scc1 k2_store")
    e("s_cmp_eq_u32 s2, 0")
    e("s_cbranch_scc1 k2_end")
    e("s_cmp_eq_u32 s2, 256")
    e("s_cbranch_scc1 k2_end")
    k.label("k2_store")
    e("s_cmp_eq_u32 s23, 0")
    e("s_cselect_b32 s28, s2, s21")
    e("s_lshl_b32 s28, s28, 14")
    e(f"s_add_u32 s28, s28, {ZPT_OFF}")
    for g in range(16):
        e(f"buffer_store_dwordx2 {vr(y[g][0],2)}, v4, s[16:19], s28 offen offset:{1024*(g%4)}")
        if g % 4 == 3 and g < 15: e("s_add_u32 s28, s28, 4096")
    e("s_waitcnt vmcnt(0)")
    k.label("k2_end")
    e("s_endpgm")
    return k.text()

def desc():
    return kernel_desc(NAME, 256, 40)
```
